```python
import torch

def _softmax(x, axis=-1):
    return torch.softmax(x, dim=axis)
def _gelu(x):
    return torch.nn.functional.gelu(x, approximate="tanh")
def _silu(x):
    return torch.nn.functional.silu(x)
def _sigmoid(x):
    return torch.sigmoid(x)
def _layernorm(x, axis=-1, eps=1e-5):
    m = x.mean(dim=axis, keepdim=True)
    v = x.var(dim=axis, keepdim=True, unbiased=False)
    return (x - m) / torch.sqrt(v + eps)
def _scatter_add(tgt, idx, src, axis=0):
    return tgt.clone().index_add_(axis, idx, src)
def _segment_sum(src, seg, n):
    out = torch.zeros((n,) + src.shape[1:], dtype=src.dtype)
    return out.index_add_(0, seg, src)
def _pad(x, pw):
    flat = tuple(v for pair in reversed(pw) for v in pair)
    return torch.nn.functional.pad(x, flat)

kernel_name = 'parallel_sum__ssm_conv_s4d__swiglu_ffn__prompt'

def setup_inputs():

    _w = (lambda a: (lambda t: t.to(torch.bfloat16) if t.is_floating_point() else t)(torch.as_tensor(a)))
    def _A_setup():
        Bsz, L, D, N = 1, 2048, 576, 128
        return {
            "u": _w((lambda *s: torch.randn(*s, dtype=torch.bfloat16) * 0.05)(Bsz, L, D)),
            "log_A_real": _w((lambda *s: torch.randn(*s, dtype=torch.bfloat16) * 3.2)(D, N) * 0.5),
            "A_imag": _w((lambda *s: torch.randn(*s, dtype=torch.bfloat16) * 0.2)(D, N) * 3.14),
            "C_real": _w((lambda *s: torch.randn(*s, dtype=torch.bfloat16) * 3.2)(D, N) / N ** 0.5),
            "C_imag": _w((lambda *s: torch.randn(*s, dtype=torch.bfloat16) * 3.2)(D, N) / N ** 0.5),
            "log_dt": _w((lambda *s: torch.randn(*s, dtype=torch.bfloat16) * 0.2)(D) * 0.5 - 4.0),
            "D_skip": _w((lambda *s: torch.randn(*s, dtype=torch.bfloat16) * 0.2)(D)),
        }
    _A_in = _A_setup()

    def _B_setup():
        B, S, D, F = 1, 2048, 576, 4608
        return {
            "x": _w((lambda *s: torch.randn(*s, dtype=torch.bfloat16) * 0.05)(B, S, D)),
            "w_gate": _w((lambda *s: torch.randn(*s, dtype=torch.bfloat16) * 0.05)(D, F)),
            "w_up": _w((lambda *s: torch.randn(*s, dtype=torch.bfloat16) * 0.05)(D, F)),
            "w_down": _w((lambda *s: torch.randn(*s, dtype=torch.bfloat16) * 0.05)(F, D)),
        }
    _B_in = _B_setup()

    return {
        "A_u": _A_in["u"],
        "A_log_A_real": _A_in["log_A_real"],
        "A_A_imag": _A_in["A_imag"],
        "A_C_real": _A_in["C_real"],
        "A_C_imag": _A_in["C_imag"],
        "A_log_dt": _A_in["log_dt"],
        "A_D_skip": _A_in["D_skip"],
        "B_x": _B_in["x"],
        "B_w_gate": _B_in["w_gate"],
        "B_w_up": _B_in["w_up"],
        "B_w_down": _B_in["w_down"],
    }

def reference(A_u, A_log_A_real, A_A_imag, A_C_real, A_C_imag, A_log_dt, A_D_skip, B_x, B_w_gate, B_w_up, B_w_down):
    def _A_ref(u, log_A_real, A_imag, C_real, C_imag, log_dt, D_skip):
        L = u.shape[1]
        dt = torch.exp(log_dt)
        A = -torch.exp(log_A_real) + 1j * A_imag
        C = (C_real + 1j * C_imag) * dt[:, None]
        pos = (lambda x, dt: x.to(dt))(torch.arange(L), log_dt.dtype)
        P = torch.exp((A * dt[:, None])[:, :, None] * pos[None, None, :])
        K = 2.0 * torch.einsum("dn,dnl->dl", C, P).real
        L2 = 2 * L
        u_t = (lambda x, *d: x.permute(*d))(u, 0, 2, 1)
        Kf = (lambda x, *a, **k: torch.fft.rfft(x.float(), *a, **k))(K, L2)
        Uf = (lambda x, *a, **k: torch.fft.rfft(x.float(), *a, **k))(u_t, L2)
        y = (lambda x, *a, **k: torch.fft.irfft(x, *a, **k).to(torch.bfloat16))(Uf * Kf[None, :, :], L2)[:, :, :L]
        y = (lambda x, *d: x.permute(*d))(y, 0, 2, 1)
        return y + u * D_skip[None, None, :]

    def _B_ref(x, w_gate, w_up, w_down):
        g = _silu(x @ w_gate)
        u = x @ w_up
        return (g * u) @ w_down

    x = A_u
    xn = _layernorm(x, axis=-1)
    return x + _A_ref(xn, A_log_A_real, A_A_imag, A_C_real, A_C_imag, A_log_dt, A_D_skip) + _B_ref(xn, B_w_gate, B_w_up, B_w_down)
```

```python
KNAME = "parallel_sum__ssm_conv_s4d__swiglu_ffn__prompt"
L, D, F, NS = 2048, 576, 4608, 128
A_X, A_LOGA, A_AIM, A_CR, A_CI, A_LDT, A_DSK, A_BX, A_WG, A_WU, A_WD, A_OUT, A_DBG, A_WS = [8*i for i in range(14)]
X_BYTES = L*D*2
PAR_BYTES = D*NS*2
W_BYTES = D*F*2
XR_PITCH = 4160
WS_XF = 0
WS_XR = WS_XF + 64*36*1024
WS_KQ = WS_XR + D*XR_PITCH
WS_Y  = WS_KQ + D*4096
WS_H  = WS_Y + D*4096
WS_P  = WS_H + 8*128*36*512
WS_END = WS_P + 8*4*8*9*8*1024
WS_BYTES = 268435456
LOG2E = 1.4426950408889634

import struct
def f2u(x):
    return struct.unpack('<I', struct.pack('<f', x))[0]
def fl(x):
    return "0x%08x" % f2u(x)

class Asm:
    def __init__(self):
        self.L = []
    def __call__(self, s):
        for ln in s.split('\n'):
            ln = ln.strip()
            if ln: self.L.append(ln)
    def label(self, n): self.L.append(n + ':')
    def text(self):
        out = []
        for l in self.L:
            out.append(l if l.endswith(':') or l.startswith('.') or l.startswith(';') else '    ' + l)
        return '\n'.join(out) + '\n'

def srd(a, s, ptr, nbytes, add=0):
    if add:
        a(f"s_add_u32 s{s}, s{ptr}, {add}\ns_addc_u32 s{s+1}, s{ptr+1}, 0")
    else:
        a(f"s_mov_b32 s{s}, s{ptr}\ns_mov_b32 s{s+1}, s{ptr+1}")
    a(f"s_mov_b32 s{s+2}, {nbytes}\ns_mov_b32 s{s+3}, 0x00020000")

def kdesc(name, vgpr, sgpr, accum):
    return f""".amdhsa_kernel {name}
  .amdhsa_next_free_vgpr {vgpr}
  .amdhsa_next_free_sgpr {sgpr}
  .amdhsa_accum_offset {accum}
  .amdhsa_group_segment_fixed_size 0
  .amdhsa_kernarg_size 112
  .amdhsa_user_sgpr_count 2
  .amdhsa_user_sgpr_kernarg_segment_ptr 1
  .amdhsa_system_sgpr_workgroup_id_x 1
  .amdhsa_float_denorm_mode_32 3
.end_amdhsa_kernel
"""
def khead(name):
    return f""".globl {name}
.p2align 8
.type {name},@function
{name}:
"""
```

```python
from common import *
LDS = 9*1024
def gen():
    a = Asm()
    a("s_cmp_ge_u32 s2, 256\ns_cbranch_scc1 FN_end")
    a(f"s_load_dwordx2 s[4:5], s[0:1], {A_WS}\ns_load_dwordx2 s[6:7], s[0:1], {A_X}\ns_load_dwordx2 s[8:9], s[0:1], {A_OUT}")
    a("v_lshrrev_b32 v1, 6, v0\nv_and_b32 v0, 63, v0")
    a("s_and_b32 s52, s2, 7\ns_bfe_u32 s54, s2, 0x20003\ns_lshr_b32 s53, s2, 5\nv_readfirstlane_b32 s3, v1")
    a("v_lshlrev_b32 v1, 4, v0")
    a("v_and_b32 v2, 15, v0\nv_mul_u32_u24 v2, 1152, v2\nv_lshrrev_b32 v3, 4, v0\nv_lshl_add_u32 v2, v3, 3, v2")
    a("s_lshl_b32 s55, s53, 8\ns_lshl_b32 s56, s52, 5\ns_add_u32 s55, s55, s56")
    a("s_mul_i32 s56, s54, 144\ns_lshl_b32 s57, s3, 4\ns_add_u32 s56, s56, s57")
    a("s_mul_i32 s57, s55, 1152\ns_lshl_b32 s58, s56, 1\ns_add_u32 s57, s57, s58\ns_add_u32 s58, s57, 18432")
    a("s_lshl_b32 s59, s53, 2\ns_add_u32 s59, s59, s54\ns_lshl_b32 s59, s59, 3\ns_add_u32 s59, s59, s52\ns_mul_i32 s59, s59, 9\ns_add_u32 s59, s59, s3\ns_lshl_b32 s59, s59, 13")
    a("v_lshrrev_b32 v4, 2, v0\nv_lshlrev_b32 v4, 12, v4\nv_and_b32 v5, 3, v0\nv_lshl_add_u32 v4, v5, 4, v4")
    a("s_lshl_b32 s60, s56, 12\ns_lshl_b32 s61, s55, 1\ns_add_u32 s60, s60, s61\ns_lshl_b32 s61, s3, 10")
    a("v_bfe_u32 v5, v0, 2, 2\nv_lshl_add_u32 v5, v3, 2, v5\nv_lshlrev_b32 v5, 6, v5\nv_and_b32 v6, 3, v0\nv_lshl_add_u32 v5, v6, 3, v5\nv_add_u32 v5, s61, v5")
    a("s_waitcnt lgkmcnt(0)")
    srd(a, 12, 4, WS_END-WS_P, WS_P)
    srd(a, 16, 4, D*4096, WS_Y)
    srd(a, 20, 6, X_BYTES)
    srd(a, 24, 8, X_BYTES)
    a("s_mov_b32 m0, s61")
    a("buffer_load_dwordx2 v[8:9], v2, s[20:23], s57 offen\nbuffer_load_dwordx2 v[10:11], v2, s[20:23], s58 offen")
    a("buffer_load_dwordx4 v4, s[16:19], s60 offen lds")
    for s in range(8):
        if s == 4: a("s_add_u32 s59, s59, 4096")
        a(f"buffer_load_dwordx4 v[{16+4*s}:{19+4*s}], v1, s[12:15], s59 offen offset:{1024*(s&3)}")
    a("s_waitcnt vmcnt(8)")
    a("ds_read_b64_tr_b16 v[12:13], v5\nds_read_b64_tr_b16 v[14:15], v5 offset:32")
    for th in range(2):
        for j in range(2):
            a(f"v_lshlrev_b32 v{48+4*th+2*j}, 16, v{8+2*th+j}\nv_and_b32 v{49+4*th+2*j}, 0xffff0000, v{8+2*th+j}")
    a("s_waitcnt lgkmcnt(0)")
    for th in range(2):
        for j in range(2):
            a(f"v_lshlrev_b32 v56, 16, v{12+2*th+j}\nv_and_b32 v57, 0xffff0000, v{12+2*th+j}")
            a(f"v_add_f32 v{48+4*th+2*j}, v{48+4*th+2*j}, v56\nv_add_f32 v{49+4*th+2*j}, v{49+4*th+2*j}, v57")
    for s in range(8):
        a(f"s_waitcnt vmcnt({7-s})")
        for d in range(4):
            r = 16+4*s+d
            a(f"v_lshlrev_b32 v56, 16, v{r}\nv_and_b32 v57, 0xffff0000, v{r}")
            a(f"v_add_f32 v{48+2*d}, v{48+2*d}, v56\nv_add_f32 v{49+2*d}, v{49+2*d}, v57")
    for d in range(4): a(f"v_cvt_pk_bf16_f32 v{8+d}, v{48+2*d}, v{49+2*d}")
    a("buffer_store_dwordx2 v[8:9], v2, s[24:27], s57 offen\nbuffer_store_dwordx2 v[10:11], v2, s[24:27], s58 offen")
    a.label("FN_end")
    a("s_endpgm")
    return khead("fin_kernel") + a.text(), kdesc("fin_kernel", 64, 80, 64)
```

```python
from common import *

RING = 0
CONV = 65536
CONV_CH = 4*XR_PITCH + 512 + 4096
LDS = CONV + 3*CONV_CH

V_L16, V_WA, V_WB, V_S1, V_S2, V_DP, V_DS, V_H, V_CA, V_CB, V_CY, V_T0, V_T1, V_T2 = range(1, 15)
XV = 16
ACC = [48, 112]
WF = 176
TMP = 200
ST = 232
C_ACC = 48; C_A = [80, 144]; C_B = [112, 176]; C_PK = 208
S_W = 3
SRD_W, SRD_XF, SRD_H, SRD_XR, SRD_KQ, SRD_Y = 12, 16, 20, 24, 28, 32
S_WM0P, S_WM0S, S_SRC, S_X0, S_X1, S_HQ0, S_HQ1, S_HS0, S_HS1, S_NL2E, S_T, S_T2, S_CH, S_COLP, S_COLS, S_CB = range(36, 52)

class VQ:
    def __init__(s): s.q = []
    def issue(s, tag): s.q.append(tag)
    def wait_n(s, tag):
        idx = max(i for i, t in enumerate(s.q) if t == tag)
        return len(s.q) - 1 - idx

def xreg(ct, t):
    if t < 32: b = (2*t+ct)*4; return f"a[{b}:{b+3}]"
    b = XV + (2*(t-32)+ct)*4; return f"v[{b}:{b+3}]"

def dma_items(GG):
    slot = GG % 8; p = GG // 9; G = GG % 9
    items = []
    if p < 4:
        for i in range(2):
            items.append([f"s_add_u32 m0, s{S_WM0P}, {slot*8192 + 2048*i}",
                          f"s_add_u32 s{S_T}, s{S_COLP}, {(64*G + 16*i)*9216 + 64*p}",
                          f"buffer_load_dwordx4 v{V_DP}, s[{SRD_W}:{SRD_W+3}], s{S_T} offen lds"])
    else:
        items.append([f"s_add_u32 m0, s{S_WM0S}, {slot*8192}",
                      f"s_add_u32 s{S_T}, s{S_COLS}, {64*G*9216}",
                      f"buffer_load_dwordx4 v{V_DS}, s[{SRD_W}:{SRD_W+3}], s{S_T} offen lds"])
    return items

def xload_items(G):
    items = []
    for kk in range(4):
        t = 4*G + kk
        for ct in range(2):
            sx = S_X0 if ct == 0 else S_X1
            items.append([f"buffer_load_dwordx4 {xreg(ct,t)}, v{V_L16}, s[{SRD_XF}:{SRD_XF+3}], s{sx} offen offset:{1024*kk}"])
    items.append([f"s_add_u32 s{S_X0}, s{S_X0}, 4096", f"s_add_u32 s{S_X1}, s{S_X1}, 4096"])
    return items

def reads_for_step(gstep):
    p = gstep // 36; t = gstep % 36
    GG = 9*p + t//4; kk = t % 4; slot = GG % 8
    wf = WF + 8*(gstep % 3)
    if p < 4:
        o = slot*8192 + kk*2048
        return [f"ds_read_b64_tr_b16 v[{wf}:{wf+1}], v{V_WA} offset:{o}",
                f"ds_read_b64_tr_b16 v[{wf+2}:{wf+3}], v{V_WA} offset:{o+256}",
                f"ds_read_b64_tr_b16 v[{wf+4}:{wf+5}], v{V_WB} offset:{o}",
                f"ds_read_b64_tr_b16 v[{wf+6}:{wf+7}], v{V_WB} offset:{o+256}"]
    o = slot*8192 + (kk >> 1)*2048 + (kk & 1)*512
    return [f"ds_read_b64_tr_b16 v[{wf}:{wf+1}], v{V_S1} offset:{o}",
            f"ds_read_b64_tr_b16 v[{wf+2}:{wf+3}], v{V_S2} offset:{o}"]

def epi_unit(R, soff, imm, stset, tb):
    out = []
    S = ST + 4*stset
    for i in range(0, 8, 2):
        T0 = TMP + (tb + i) % 8; T1 = TMP + (tb + i + 1) % 8
        g0, g1, u0, u1 = R+i, R+i+1, R+8+i, R+9+i
        out += [(f"v_mul_f32 v{T0}, s{S_NL2E}, v{g0}", 1), (f"v_mul_f32 v{T1}, s{S_NL2E}, v{g1}", 1),
                (f"v_exp_f32 v{T0}, v{T0}", 2), (f"v_exp_f32 v{T1}, v{T1}", 2),
                (f"v_mul_f32 v{u0}, v{g0}, v{u0}", 1),
                (f"v_add_f32 v{T0}, 1.0, v{T0}", 1), (f"v_add_f32 v{T1}, 1.0, v{T1}", 1),
                (f"v_rcp_f32 v{T0}, v{T0}", 2), (f"v_rcp_f32 v{T1}, v{T1}", 2),
                (f"v_mul_f32 v{u1}, v{g1}, v{u1}", 1),
                (f"v_mul_f32 v{u0}, v{u0}, v{T0}", 1), (f"v_mul_f32 v{u1}, v{u1}, v{T1}", 1),
                (f"v_cvt_pk_bf16_f32 v{S+i//2}, v{u0}, v{u1}", 1)]
    out.append((f"buffer_store_dwordx4 v[{S}:{S+3}], v{V_H}, s[{SRD_H}:{SRD_H+3}], s{soff} offen offset:{imm}", 1, 'st'))
    return out

def epi_stream(p):
    base = ACC[p % 2]; out = []; n = 0
    if p < 4:
        for ch in range(2):
            for ct in range(2):
                out += epi_unit(base + (2*ch+ct)*16, S_HQ0 if ct == 0 else S_HQ1, (2*p+ch)*512, n % 2, 0); n += 1
    else:
        for ct in range(2):
            out += epi_unit(base + ct*16, S_HS0 if ct == 0 else S_HS1, 0, n % 2, 0); n += 1
    return out

def gen(do_conv=True):
    a = Asm(); vq = VQ()
    a("s_cmp_ge_u32 s2, 256\ns_cbranch_scc1 G1_end")
    a(f"s_load_dwordx2 s[4:5], s[0:1], {A_WS}\ns_load_dwordx2 s[6:7], s[0:1], {A_WG}\ns_load_dwordx2 s[8:9], s[0:1], {A_WU}")
    a(f"v_lshrrev_b32 v{V_T0}, 6, v0\nv_and_b32 v0, 63, v0\ns_and_b32 s52, s2, 7\ns_lshr_b32 s53, s2, 3")
    a(f"v_readfirstlane_b32 s{S_W}, v{V_T0}\ns_and_b32 s54, s53, 3\ns_lshr_b32 s53, s53, 2")
    a(f"v_lshlrev_b32 v{V_L16}, 4, v0")
    a(f"v_lshrrev_b32 v{V_T0}, 4, v0\nv_and_b32 v{V_T1}, 1, v{V_T0}\nv_lshrrev_b32 v{V_T0}, 1, v{V_T0}")
    a(f"v_bfe_u32 v{V_T2}, v0, 2, 2\nv_lshl_add_u32 v{V_T0}, v{V_T0}, 3, v{V_T2}")
    a(f"v_and_b32 v{V_T2}, 3, v0\nv_lshlrev_b32 v{V_T2}, 3, v{V_T2}\nv_lshl_add_u32 v{V_T2}, v{V_T1}, 10, v{V_T2}")
    a(f"v_lshl_add_u32 v{V_WA}, v{V_T0}, 6, v{V_T2}\nv_lshl_add_u32 v{V_WA}, v{V_T1}, 5, v{V_WA}")
    a(f"v_xor_b32 v{V_WB}, 32, v{V_WA}")
    a(f"v_lshl_add_u32 v{V_S1}, v{V_T0}, 5, v{V_T2}\nv_lshl_add_u32 v{V_S1}, v{V_T1}, 7, v{V_S1}")
    a(f"v_lshlrev_b32 v{V_T1}, 8, v{V_T1}\nv_sub_u32 v{V_S2}, v{V_S1}, v{V_T1}\nv_add_u32 v{V_S2}, 128, v{V_S2}")
    a(f"s_and_b32 s55, s{S_W}, 1\ns_lshr_b32 s56, s{S_W}, 1")
    a(f"v_lshrrev_b32 v{V_T0}, 2, v0\nv_mul_u32_u24 v{V_DP}, 9216, v{V_T0}\nv_and_b32 v{V_T0}, 3, v0")
    a(f"s_lshl_b32 s57, s55, 1\nv_xor_b32 v{V_T0}, s57, v{V_T0}\nv_lshl_add_u32 v{V_DP}, v{V_T0}, 4, v{V_DP}")
    a(f"v_lshrrev_b32 v{V_T0}, 1, v0\ns_lshl_b32 s57, s55, 2\nv_xor_b32 v{V_T0}, s57, v{V_T0}\nv_mul_u32_u24 v{V_DS}, 9216, v{V_T0}")
    a(f"v_and_b32 v{V_T0}, 1, v0\nv_lshl_add_u32 v{V_DS}, v{V_T0}, 4, v{V_DS}")
    a(f"v_bfe_u32 v{V_T0}, v0, 4, 1\nv_mul_u32_u24 v{V_H}, 18432, v{V_T0}\nv_lshrrev_b32 v{V_T0}, 5, v0\nv_lshl_add_u32 v{V_H}, v{V_T0}, 8, v{V_H}")
    a(f"v_and_b32 v{V_T0}, 15, v0\nv_lshl_add_u32 v{V_H}, v{V_T0}, 4, v{V_H}")
    a(f"s_lshl_b32 s{S_WM0P}, s56, 12\ns_lshl_b32 s57, s55, 10\ns_add_u32 s{S_WM0P}, s{S_WM0P}, s57")
    a(f"s_lshl_b32 s{S_WM0S}, s56, 11\ns_add_u32 s{S_WM0S}, s{S_WM0S}, s57")
    a(f"s_mul_i32 s58, s52, 1152\ns_mul_i32 s59, s54, 288\ns_add_u32 s58, s58, s59\ns_and_b32 s60, s54, 1")
    a(f"s_mul_i32 s59, s56, {32*9216}\ns_add_u32 s58, s58, s59")
    a(f"s_lshl_b32 s61, s60, 5\ns_add_u32 s{S_COLP}, s58, s61")
    a(f"s_xor_b32 s61, s60, 1\ns_lshl_b32 s61, s61, 8\ns_add_u32 s{S_COLS}, s58, s61")
    a(f"s_lshl_b32 s59, s53, 3\ns_lshl_b32 s61, s{S_W}, 1\ns_add_u32 s59, s59, s61\ns_mul_i32 s{S_X0}, s59, 36864\ns_add_u32 s{S_X1}, s{S_X0}, 36864")
    a(f"s_lshl_b32 s59, s52, 7\ns_lshl_b32 s61, s53, 4\ns_add_u32 s59, s59, s61\ns_lshl_b32 s61, s{S_W}, 2\ns_add_u32 s59, s59, s61")
    a(f"s_mul_i32 s59, s59, 18432\ns_mul_i32 s61, s54, 4608\ns_add_u32 s59, s59, s61")
    a(f"s_lshl_b32 s61, s60, 9\ns_add_u32 s{S_HQ0}, s59, s61\ns_add_u32 s{S_HQ1}, s{S_HQ0}, 36864")
    a(f"s_xor_b32 s61, s60, 1\ns_lshl_b32 s61, s61, 12\ns_add_u32 s{S_HS0}, s59, s61\ns_add_u32 s{S_HS1}, s{S_HS0}, 36864")
    a(f"s_mov_b32 s{S_NL2E}, {fl(-LOG2E)}")
    a("s_waitcnt lgkmcnt(0)")
    a(f"s_cmp_eq_u32 s55, 0\ns_cselect_b32 s{SRD_W}, s6, s8\ns_cselect_b32 s{SRD_W+1}, s7, s9\ns_mov_b32 s{SRD_W+2}, {W_BYTES}\ns_mov_b32 s{SRD_W+3}, 0x00020000")
    srd(a, SRD_XF, 4, 64*36*1024, WS_XF)
    srd(a, SRD_H, 4, 8*128*36*512, WS_H)
    stream = []
    for G in range(9):
        if G < 8: stream += [(it, 'W%d' % G) for it in dma_items(G)]
        stream += [(it, 'X%d' % G if it[0].startswith('buffer') else None) for it in xload_items(G)]
    for it, tag in stream:
        if tag: vq.issue(tag)
    if do_conv:
        srd(a, SRD_XR, 4, D*XR_PITCH, WS_XR)
        srd(a, SRD_KQ, 4, D*4096, WS_KQ)
        srd(a, SRD_Y, 4, D*4096, WS_Y)
        a(f"s_min_u32 s59, s2, 64\ns_lshl_b32 s61, s2, 1\ns_add_u32 s{S_CH}, s59, s61\ns_add_u32 s{S_CH}, s{S_CH}, s{S_W}")
        a(f"s_cmp_lt_u32 s2, 64\ns_cselect_b32 s59, 3, 2\ns_cmp_ge_u32 s{S_W}, s59\ns_cbranch_scc1 G1_noconv")
        a(f"s_mul_i32 s{S_CB}, s{S_W}, {CONV_CH}\ns_add_u32 s{S_CB}, s{S_CB}, {CONV}")
        a(f"s_mul_i32 s62, s{S_CH}, {XR_PITCH}\ns_lshl_b32 s63, s{S_CH}, 12")
        for c in range(4):
            for i in range(4):
                a(f"s_add_u32 m0, s{S_CB}, {c*XR_PITCH + 1024*i}\ns_add_u32 s{S_T}, s62, {2*c + 1024*i}")
                a(f"buffer_load_dwordx4 v{V_L16}, s[{SRD_XR}:{SRD_XR+3}], s{S_T} offen lds")
        for i in range(4):
            a(f"s_add_u32 m0, s{S_CB}, {4*XR_PITCH + 512 + 1024*i}\ns_add_u32 s{S_T}, s63, {1024*i}")
            a(f"buffer_load_dwordx4 v{V_L16}, s[{SRD_KQ}:{SRD_KQ+3}], s{S_T} offen lds")
        a(f"v_mov_b32 v{C_PK}, 0\nv_mov_b32 v{C_PK+1}, 0\nv_mov_b32 v{C_PK+2}, 0\nv_mov_b32 v{C_PK+3}, 0")
        a(f"v_add_u32 v{V_T0}, {4*XR_PITCH}, v{V_L16}")
        a(f"v_bfe_u32 v{V_T1}, v0, 2, 2\nv_mul_u32_u24 v{V_T1}, {XR_PITCH}, v{V_T1}\nv_and_b32 v{V_T2}, 3, v0\nv_lshl_add_u32 v{V_T1}, v{V_T2}, 4, v{V_T1}\nv_add_u32 v{V_T1}, 4096, v{V_T1}")
        a(f"v_cmp_gt_u32 vcc, 32, v0\ns_nop 1\nv_cndmask_b32 v{V_T0}, v{V_T1}, v{V_T0}, vcc\nv_add_u32 v{V_T0}, s{S_CB}, v{V_T0}")
        a(f"ds_write_b128 v{V_T0}, v[{C_PK}:{C_PK+3}]")
        a(f"v_and_b32 v{V_T0}, 3, v0\nv_sub_u32 v{V_T0}, 3, v{V_T0}\nv_mul_u32_u24 v{V_CA}, {XR_PITCH}, v{V_T0}")
        a(f"v_bfe_u32 v{V_T0}, v0, 2, 2\nv_lshlrev_b32 v{V_T0}, 3, v{V_T0}\nv_sub_u32 v{V_CA}, v{V_CA}, v{V_T0}")
        a(f"v_bfe_u32 v{V_T0}, v0, 4, 1\nv_lshlrev_b32 v{V_T0}, 4, v{V_T0}\nv_lshrrev_b32 v{V_T1}, 5, v0\nv_lshlrev_b32 v{V_T1}, 5, v{V_T1}\nv_sub_u32 v{V_T0}, v{V_T0}, v{V_T1}")
        a(f"v_add_u32 v{V_CA}, v{V_CA}, v{V_T0}\nv_add_u32 v{V_CA}, {4088 - 512*7 - 32*14}, v{V_CA}\nv_add_u32 v{V_CA}, s{S_CB}, v{V_CA}")
        a(f"v_and_b32 v{V_T1}, 15, v0\nv_lshl_add_u32 v{V_CB}, v{V_T1}, 5, v{V_T0}\nv_add_u32 v{V_CB}, {4*XR_PITCH + 64}, v{V_CB}\nv_add_u32 v{V_CB}, s{S_CB}, v{V_CB}")
        a(f"v_lshlrev_b32 v{V_CY}, 5, v{V_T1}\nv_lshrrev_b32 v{V_T1}, 4, v0\nv_lshl_add_u32 v{V_CY}, v{V_T1}, 3, v{V_CY}")
        NPRE = 22
        npre_vm = 0
        for it, tag in stream[:NPRE]:
            for ins in it: a(ins)
            if tag: npre_vm += 1
        a(f"s_waitcnt vmcnt({npre_vm}) lgkmcnt(0)")
        def creads(rho):
            k0 = 2*rho; A = C_A[rho & 1]; B = C_B[rho & 1]; out = []
            for p in range(8):
                o = 512*(7-p) + 32*(14-k0)
                ob = 512*p + 32*(14-k0)
                out.append(f"ds_read_b128 v[{B+4*p}:{B+4*p+3}], v{V_CB} offset:{ob}")
                out.append(f"ds_read_b64 v[{A+4*p}:{A+4*p+1}], v{V_CA} offset:{o}")
                out.append(f"ds_read_b64 v[{A+4*p+2}:{A+4*p+3}], v{V_CA} offset:{o+8}")
            return out
        for ins in creads(0): a(ins)
        rest = [ins for it, tag in stream[NPRE:] for ins in [it]]
        ri = 0
        nrest = len(rest)
        gap_no = 0
        for rho in range(8):
            A = C_A[rho & 1]; B = C_B[rho & 1]
            nxt = creads(rho+1) if rho < 7 else []
            a("s_waitcnt lgkmcnt(0)")
            gi = 0
            for p in range(8):
                for c in range(p, 8):
                    acc = C_ACC + 4*c
                    cc = "0" if (rho == 0 and p == 0) else f"v[{acc}:{acc+3}]"
                    a(f"v_mfma_f32_16x16x32_bf16 v[{acc}:{acc+3}], v[{A+4*p}:{A+4*p+3}], v[{B+4*(c-p)}:{B+4*(c-p)+3}], {cc}")
                    if gi < len(nxt): a(nxt[gi])
                    else:
                        want = (nrest * (gap_no+1)) // (8*12)
                        while ri < min(want, nrest):
                            for ins in rest[ri]: a(ins)
                            ri += 1
                        gap_no += 1
                    gi += 1
            if rho == 7:
                pass
        while ri < nrest:
            for ins in rest[ri]: a(ins)
            ri += 1
        a(f"s_lshl_b32 s63, s{S_CH}, 12\ns_nop 7")
        for c in range(8):
            acc = C_ACC + 4*c; pk = C_PK + 2*(c % 4)
            a(f"v_cvt_pk_bf16_f32 v{pk}, v{acc}, v{acc+1}\nv_cvt_pk_bf16_f32 v{pk+1}, v{acc+2}, v{acc+3}")
            a(f"buffer_store_dwordx2 v[{pk}:{pk+1}], v{V_CY}, s[{SRD_Y}:{SRD_Y+3}], s63 offen offset:{512*c}")
        a("s_branch G1_join")
        a.label("G1_noconv")
    for it, tag in stream:
        for ins in it: a(ins)
    a.label("G1_join")
    NSTEP = 180
    def step_info(gs):
        p = gs // 36; t = gs % 36
        return p, t
    a(f"s_waitcnt vmcnt({min(63, vq.wait_n('W0'))})\ns_barrier")
    for gs in (0, 1):
        for ins in reads_for_step(gs): a(ins)
    for p in range(5):
        nm = 4 if p < 4 else 2
        ng = 36*nm
        pre = [[] for _ in range(ng)]; gap = [[] for _ in range(ng)]; cost = [0]*ng
        sim = []
        mf = []
        base = ACC[p % 2]
        for t in range(36):
            gs = 36*p + t; wf = WF + 8*(gs % 3)
            for j in range(nm):
                ch, ct = (j >> 1, j & 1) if p < 4 else (0, j)
                acc = base + (2*ch+ct)*16
                c = "0" if t == 0 else f"v[{acc}:{acc+15}]"
                mf.append(f"v_mfma_f32_32x32x16_bf16 v[{acc}:{acc+15}], v[{wf+4*ch}:{wf+4*ch+3}], {xreg(ct,t)}, {c}")
            if gs + 2 < NSTEP:
                rd = reads_for_step(gs+2)
                for j, ins in enumerate(rd):
                    gj = min(t*nm + j, t*nm + nm - 1) if len(rd) <= nm else t*nm + (j * nm)//len(rd)
                    gap[gj].append(('i', ins)); cost[gj] += 1
            nxt_reads = len(reads_for_step(gs+1)) if gs + 1 < NSTEP else 0
            pre[t*nm].append(('lgkm', nxt_reads))
            GG = 9*p + t//4; kk = t % 4
            if kk == 0 and p == 0:
                pre[t*nm].append(('vmwait', 'X%d' % (t//4)))
            if kk == 2 and GG + 1 < 45:
                pre[t*nm].append(('vmwait', 'W%d' % (GG+1)))
                pre[t*nm].append(('i', 's_barrier'))
                if GG + 7 < 45 and GG + 7 >= 8:
                    for n, it in enumerate(dma_items(GG+7)):
                        gj = t*nm + 1 + n*2 if nm == 4 else t*nm + 1
                        gj = min(gj, ng-1)
                        gap[gj].append(('dma', it, 'W%d' % (GG+7))); cost[gj] += 3
        if p > 0:
            es = epi_stream(p-1)
            tot = sum(e[1] for e in es)
            cap = 5.4
            ei = 0; done = 0.0
            start = 1
            for gi in range(start, ng):
                target = tot * (gi - start + 1) / (ng - start - 2) if ng - start - 2 > 0 else tot
                while ei < len(es) and done + es[ei][1] <= target + 0.5 and cost[gi] + es[ei][1] <= cap + (1 if p == 4 else 0):
                    e = es[ei]; gap[gi].append(('st', e[0]) if len(e) > 2 else ('i', e[0])); cost[gi] += e[1]; done += e[1]; ei += 1
            while ei < len(es):
                e = es[ei]; gap[ng-1].append(('st', e[0]) if len(e) > 2 else ('i', e[0])); ei += 1
        for i in range(ng):
            for it in pre[i]:
                if it[0] == 'i': a(it[1])
                elif it[0] == 'lgkm': a(f"s_waitcnt lgkmcnt({it[1]})")
                elif it[0] == 'vmwait': a(f"s_waitcnt vmcnt({min(63, vq.wait_n(it[1]))})")
            a(mf[i])
            for it in gap[i]:
                if it[0] == 'i': a(it[1])
                elif it[0] == 'st': a(it[1]); vq.issue('st')
                elif it[0] == 'dma':
                    for ins in it[1]: a(ins)
                    vq.issue(it[2])
    a("s_nop 7\ns_nop 3")
    for e in epi_stream(4): a(e[0])
    a.label("G1_end")
    a("s_endpgm")
    return khead("g1_kernel") + a.text(), kdesc("g1_kernel", 512, 80, 256)
```

```python
from common import *
from gemm1 import VQ

SLAB = 9216
NSLOT = 16
LDS = NSLOT*SLAB
V_L16, V_RD, V_T0, V_T1, V_T2 = 1, 2, 3, 4, 5
V_D = 6
HV = 16
ACC = 48
WF = 192
PK = 208
S_W = 3
SRD_WD, SRD_H, SRD_P = 12, 16, 20
S_H0 = 36
S_SRC, S_T, S_PB = 40, 41, 42

def hreg(tau, u):
    if u < 16: b = (u*4+tau)*4; return f"a[{b}:{b+3}]"
    b = HV + ((u-16)*4+tau)*4; return f"v[{b}:{b+3}]"
def accreg(tau, nu): return ACC + (tau*9+nu)*4

def slab_items(rho):
    items = []
    slot0 = (4*rho) % NSLOT
    items.append(('s', [f"s_add_u32 s{S_T}, s{S_SRC}, {4*rho*32*1152}"]))
    for i in range(9):
        items.append(('vm', [f"s_add_u32 m0, s43, {slot0*SLAB + 1024*i}",
                             f"buffer_load_dwordx4 v{V_D+i}, s[{SRD_WD}:{SRD_WD+3}], s{S_T} offen lds"]))
    return items
def h_items(u):
    items = []
    for tau in range(4):
        items.append(('vm', [f"buffer_load_dwordx4 {hreg(tau,u)}, v{V_L16}, s[{SRD_H}:{SRD_H+3}], s{S_H0+tau} offen offset:{1024*(u&3)}"]))
    if (u & 3) == 3:
        items.append(('s', [f"s_add_u32 s{S_H0+tau}, s{S_H0+tau}, 4096" for tau in range(4)]))
    return items
def frag_reads(fi):
    u, nu = divmod(fi, 9)
    slot = u % NSLOT
    wf = WF + 4*(fi % 4)
    base = slot*SLAB + 32*nu
    reg = V_RD if base + 2304 < 65536 else (V_T1 if base - 64512 + 2304 < 65536 else V_T2)
    if reg == V_T1: base -= 64512
    if reg == V_T2: base -= 129024
    return [f"ds_read_b64_tr_b16 v[{wf}:{wf+1}], v{reg} offset:{base}",
            f"ds_read_b64_tr_b16 v[{wf+2}:{wf+3}], v{reg} offset:{base+2304}"]

def gen():
    a = Asm(); vq = VQ()
    a("s_cmp_ge_u32 s2, 256\ns_cbranch_scc1 G2_end")
    a(f"s_load_dwordx2 s[4:5], s[0:1], {A_WS}\ns_load_dwordx2 s[6:7], s[0:1], {A_WD}")
    a(f"v_lshrrev_b32 v{V_T0}, 6, v0\nv_and_b32 v0, 63, v0\ns_and_b32 s52, s2, 7\ns_lshr_b32 s53, s2, 3")
    a(f"v_readfirstlane_b32 s{S_W}, v{V_T0}\ns_and_b32 s54, s53, 3\ns_lshr_b32 s53, s53, 2")
    a(f"v_lshlrev_b32 v{V_L16}, 4, v0")
    a(f"s_mov_b32 s55, {(2**32 + 287)//288}")
    for i in range(9):
        a(f"v_add_u32 v{V_T0}, {1024*i}, v{V_L16}\nv_mul_hi_u32 v{V_D+i}, v{V_T0}, s55\nv_mul_u32_u24 v{V_D+i}, {1152-288}, v{V_D+i}\nv_add_u32 v{V_D+i}, v{V_D+i}, v{V_T0}")
    a(f"v_lshrrev_b32 v{V_T0}, 5, v0\nv_lshlrev_b32 v{V_T0}, 4, v{V_T0}\nv_bfe_u32 v{V_RD}, v0, 4, 1\nv_lshl_add_u32 v{V_T0}, v{V_RD}, 2, v{V_T0}")
    a(f"v_bfe_u32 v{V_RD}, v0, 2, 2\nv_add_u32 v{V_T0}, v{V_T0}, v{V_RD}\nv_mul_u32_u24 v{V_T0}, 288, v{V_T0}\nv_and_b32 v{V_RD}, 3, v0\nv_lshl_add_u32 v{V_RD}, v{V_RD}, 3, v{V_T0}")
    a(f"v_add_u32 v{V_T1}, 64512, v{V_RD}\nv_add_u32 v{V_T2}, 129024, v{V_RD}")
    a(f"s_mul_i32 s56, s52, {576*1152}\ns_mul_i32 s57, s54, 288\ns_add_u32 s56, s56, s57\ns_mul_i32 s57, s{S_W}, {32*1152}\ns_add_u32 s{S_SRC}, s56, s57")
    a(f"s_mul_i32 s43, s{S_W}, {SLAB}")
    a(f"s_lshl_b32 s56, s52, 7\ns_lshl_b32 s57, s53, 4\ns_add_u32 s56, s56, s57\ns_lshl_b32 s57, s{S_W}, 2\ns_add_u32 s56, s56, s57\ns_mul_i32 s{S_H0}, s56, 18432")
    for tau in range(1, 4): a(f"s_add_u32 s{S_H0+tau}, s{S_H0}, {18432*tau}")
    a(f"s_lshl_b32 s56, s53, 2\ns_add_u32 s56, s56, s54\ns_lshl_b32 s56, s56, 3\ns_lshl_b32 s57, s{S_W}, 1\ns_add_u32 s56, s56, s57\ns_mul_i32 s56, s56, 72\ns_add_u32 s56, s56, s52\ns_lshl_b32 s{S_PB}, s56, 10")
    a("s_waitcnt lgkmcnt(0)")
    srd(a, SRD_WD, 6, W_BYTES)
    srd(a, SRD_H, 4, 8*128*36*512, WS_H)
    srd(a, SRD_P, 4, WS_END-WS_P, WS_P)
    def emit_items(items, tag):
        for kind, ins in items:
            for i in ins: a(i)
            if kind == 'vm': vq.issue(tag)
    emit_items(slab_items(0), 'S0')
    for u in range(4): emit_items(h_items(u), 'H%d' % u)
    emit_items(slab_items(1), 'S1')
    for u in range(4, 8): emit_items(h_items(u), 'H%d' % u)
    a(f"s_waitcnt vmcnt({vq.wait_n('S0')})\ns_barrier")
    for fi in (0, 1):
        for ins in frag_reads(fi): a(ins)
    NF = 18*9
    fill = {0: [(k, i, 'S2') for k, i in slab_items(2)] + [(k, i, 'H%d' % u) for u in range(8, 12) for k, i in h_items(u)],
            1: [(k, i, 'S3') for k, i in slab_items(3)] + [(k, i, 'H%d' % u) for u in range(12, 16) for k, i in h_items(u)],
            2: [(k, i, 'H%d' % u) for u in range(16, 18) for k, i in h_items(u)]}
    for u in range(18):
        rho = u // 4
        q = fill.get(rho, [])
        for nu in range(9):
            fi = 9*u + nu; wf = WF + 4*(fi % 4)
            if nu == 0: a(f"s_waitcnt vmcnt({min(63, vq.wait_n('H%d' % u))})")
            if (u % 4 == 3 and nu == 7 and rho + 1 <= 4):
                if rho + 1 <= 3: a(f"s_waitcnt vmcnt({min(63, vq.wait_n('S%d' % (rho+1)))})")
                else: a(f"s_waitcnt vmcnt({min(63, len(vq.q) - vq.marker)})")
                a("s_barrier")
            a(f"s_waitcnt lgkmcnt({2 if fi+1 < NF else 0})")
            rd = frag_reads(fi+2) if fi+2 < NF else []
            for tau in range(4):
                acc = accreg(tau, nu)
                c = "0" if u == 0 else f"v[{acc}:{acc+3}]"
                a(f"v_mfma_f32_16x16x32_bf16 v[{acc}:{acc+3}], v[{wf}:{wf+3}], {hreg(tau,u)}, {c}")
                if tau in (0, 1) and tau < len(rd): a(rd[tau])
                elif q and (tau == 2 or tau == 3):
                    k, ins, tag = q.pop(0)
                    for i in ins: a(i)
                    if k == 'vm': vq.issue(tag)
            if u == 8 and nu == 0:
                a(f"s_cmp_ge_u32 s{S_W}, 2\ns_cbranch_scc1 G2_skip4")
                for k, ins in slab_items(4):
                    for i in ins: a(i)
                a.label("G2_skip4")
                vq.marker = len(vq.q)
        if u == 8:
            pass
    a("s_nop 7")
    n = 0
    for th in range(2):
        for nu in range(9):
            pk = PK + 4*(n % 2); n += 1
            for j in range(2):
                acc = accreg(2*th+j, nu)
                a(f"v_cvt_pk_bf16_f32 v{pk+2*j}, v{acc}, v{acc+1}\nv_cvt_pk_bf16_f32 v{pk+2*j+1}, v{acc+2}, v{acc+3}")
            a(f"s_add_u32 s{S_T}, s{S_PB}, {(th*9+nu)*8192}\nbuffer_store_dwordx4 v[{pk}:{pk+3}], v{V_L16}, s[{SRD_P}:{SRD_P+3}], s{S_T} offen")
    a.label("G2_end")
    a("s_endpgm")
    return khead("g2_kernel") + a.text(), kdesc("g2_kernel", 512, 80, 256)
```

```python
from common import *

def gen_prep():
    a = Asm()
    a("s_cmp_ge_u32 s2, 256\ns_cbranch_scc1 P_end")
    a(f"s_load_dwordx2 s[4:5], s[0:1], {A_WS}")
    a("v_lshrrev_b32 v1, 6, v0\nv_and_b32 v0, 63, v0\ns_cmp_ge_u32 s2, 64")
    a("v_readfirstlane_b32 s3, v1")
    a("s_cbranch_scc1 P_kgen")
    a(f"s_load_dwordx2 s[6:7], s[0:1], {A_X}")
    a("v_and_b32 v1, 31, v0\nv_lshrrev_b32 v2, 5, v0")
    a("v_mul_u32_u24 v3, 1152, v1\nv_lshlrev_b32 v48, 4, v2\nv_add_u32 v3, v3, v48")
    a("s_mul_i32 s20, s2, 36864\ns_mul_i32 s21, s3, 96\ns_add_u32 s22, s20, s21")
    a("s_waitcnt lgkmcnt(0)")
    srd(a, 8, 6, X_BYTES)
    for i in range(3):
        a(f"buffer_load_dwordx4 v[{4+4*i}:{7+4*i}], v3, s[8:11], s22 offen offset:{32*i}")
    srd(a, 12, 4, 64*36*1024, WS_XF)
    srd(a, 16, 4, D*XR_PITCH, WS_XR)
    a("v_mul_u32_u24 v42, 48, v1\ns_lshl_b32 s23, s3, 2\nv_add_u32 v43, s23, v42")
    a("s_waitcnt vmcnt(0)")
    for i in range(12):
        a(f"v_lshlrev_b32 v{16+2*i}, 16, v{4+i}\nv_and_b32 v{17+2*i}, 0xffff0000, v{4+i}")
    for i in range(12): a(f"v_add_f32 v{4+i}, v{16+2*i}, v{17+2*i}")
    for i in range(6): a(f"v_add_f32 v{4+i}, v{4+i}, v{10+i}")
    for i in range(3): a(f"v_add_f32 v{4+i}, v{4+i}, v{7+i}")
    a("v_add_f32 v4, v4, v5\nv_add_f32 v40, v4, v6\nv_mov_b32 v41, v40\ns_nop 1")
    a("v_permlane32_swap_b32 v40, v41\ns_nop 1\nv_add_f32 v40, v40, v41")
    a("ds_write_b32 v43, v40\ns_waitcnt lgkmcnt(0)\ns_barrier")
    a("ds_read_b128 v[4:7], v42\nds_read_b128 v[8:11], v42 offset:16\nds_read_b128 v[12:15], v42 offset:32\ns_waitcnt lgkmcnt(0)")
    for i in range(6): a(f"v_add_f32 v{4+i}, v{4+i}, v{10+i}")
    for i in range(3): a(f"v_add_f32 v{4+i}, v{4+i}, v{7+i}")
    a(f"v_add_f32 v4, v4, v5\nv_add_f32 v4, v4, v6\nv_mul_f32 v44, {fl(1.0/576)}, v4")
    for i in range(24): a(f"v_sub_f32 v{16+i}, v{16+i}, v44")
    a("v_mul_f32 v40, v16, v16\nv_mul_f32 v41, v17, v17")
    for i in range(2, 24, 2): a(f"v_fmac_f32 v40, v{16+i}, v{16+i}\nv_fmac_f32 v41, v{17+i}, v{17+i}")
    a("v_add_f32 v40, v40, v41\ns_nop 0\nv_mov_b32 v41, v40\ns_nop 1")
    a("v_permlane32_swap_b32 v40, v41\ns_nop 1\nv_add_f32 v40, v40, v41")
    a("ds_write_b32 v43, v40 offset:1536\ns_waitcnt lgkmcnt(0)\ns_barrier")
    a("ds_read_b128 v[4:7], v42 offset:1536\nds_read_b128 v[8:11], v42 offset:1552\nds_read_b128 v[12:15], v42 offset:1568\ns_waitcnt lgkmcnt(0)")
    for i in range(6): a(f"v_add_f32 v{4+i}, v{4+i}, v{10+i}")
    for i in range(3): a(f"v_add_f32 v{4+i}, v{4+i}, v{7+i}")
    a(f"v_add_f32 v4, v4, v5\nv_add_f32 v4, v4, v6\nv_mov_b32 v5, {fl(1e-5)}\nv_fmac_f32 v5, {fl(1.0/576)}, v4")
    a("v_rsq_f32 v45, v5\ns_nop 0")
    for i in range(24): a(f"v_mul_f32 v{16+i}, v{16+i}, v45")
    for i in range(12): a(f"v_cvt_pk_bf16_f32 v{4+i}, v{16+2*i}, v{17+2*i}")
    a("v_lshlrev_b32 v46, 4, v0\ns_mul_i32 s21, s3, 3072\ns_add_u32 s22, s20, s21")
    for i in range(3):
        a(f"buffer_store_dwordx4 v[{4+4*i}:{7+4*i}], v46, s[12:15], s22 offen offset:{1024*i}")
    TB = 4096; TP = 1312
    a(f"v_mul_u32_u24 v47, {TP}, v1\nv_add_u32 v47, v47, v48\ns_mul_i32 s21, s3, 96\nv_add_u32 v47, s21, v47")
    for i in range(3):
        a(f"ds_write_b128 v47, v[{4+4*i}:{7+4*i}] offset:{TB+32*i}")
    a("v_lshrrev_b32 v49, 4, v0\nv_and_b32 v50, 15, v0\nv_lshrrev_b32 v51, 2, v50\nv_and_b32 v52, 3, v0")
    a("v_lshlrev_b32 v53, 3, v49\nv_add_u32 v53, v53, v51\nv_sub_u32 v53, 31, v53")
    a(f"v_mul_u32_u24 v53, {TP}, v53\nv_lshlrev_b32 v52, 3, v52\nv_add_u32 v53, v53, v52\nv_add_u32 v53, s21, v53")
    a(f"v_subrev_u32 v54, {4*TP}, v53")
    a(f"v_mul_u32_u24 v55, {XR_PITCH}, v50\nv_lshlrev_b32 v49, 4, v49\nv_add_u32 v55, v55, v49")
    a(f"s_mul_i32 s24, s3, {3*16*XR_PITCH}\ns_lshl_b32 s25, s2, 6\ns_sub_u32 s25, 4032, s25\ns_add_u32 s25, s25, s24")
    a("s_waitcnt lgkmcnt(0)\ns_barrier")
    for i in range(3):
        a(f"ds_read_b64_tr_b16 v[{16+4*i}:{17+4*i}], v53 offset:{TB+32*i}")
        a(f"ds_read_b64_tr_b16 v[{18+4*i}:{19+4*i}], v54 offset:{TB+32*i}")
    a("s_waitcnt lgkmcnt(0)")
    for i in range(3):
        a(f"s_add_u32 s26, s25, {i*16*XR_PITCH}\nbuffer_store_dwordx4 v[{16+4*i}:{19+4*i}], v55, s[16:19], s26 offen")
    a("s_cmp_lg_u32 s2, 0\ns_cbranch_scc1 P_end")
    a("v_mov_b32 v28, 0\nv_mov_b32 v29, 0\nv_mov_b32 v30, 0\nv_mov_b32 v31, 0")
    for i in range(3):
        a(f"s_add_u32 s26, s24, {i*16*XR_PITCH+4096}\nbuffer_store_dwordx4 v[28:31], v55, s[16:19], s26 offen")
    a("s_endpgm")
    a.label("P_kgen")
    for r, off in ((6, A_LOGA), (8, A_AIM), (10, A_CR), (12, A_CI), (14, A_LDT), (16, A_DSK)):
        a(f"s_load_dwordx2 s[{r}:{r+1}], s[0:1], {off}")
    a("s_sub_u32 s20, s2, 64\ns_mul_i32 s20, s20, 3\ns_lshr_b32 s21, s3, 2\ns_add_u32 s20, s20, s21")
    a("s_and_b32 s22, s3, 3\ns_and_b32 s23, s22, 1\ns_lshr_b32 s24, s22, 1")
    a("s_lshl_b32 s25, s23, 6\nv_add_u32 v1, s25, v0")
    a("s_lshl_b32 s26, s20, 8\nv_lshlrev_b32 v2, 1, v1\nv_add_u32 v2, s26, v2")
    a("s_lshl_b32 s27, s20, 1\nv_mov_b32 v3, s27")
    a("s_waitcnt lgkmcnt(0)")
    srd(a, 28, 6, PAR_BYTES); srd(a, 32, 8, PAR_BYTES); srd(a, 36, 10, PAR_BYTES); srd(a, 40, 12, PAR_BYTES)
    srd(a, 44, 14, D*2); srd(a, 48, 16, D*2); srd(a, 52, 4, D*4096, WS_KQ)
    a("buffer_load_ushort v8, v3, s[44:47], 0 offen\nbuffer_load_ushort v4, v2, s[28:31], 0 offen")
    a("buffer_load_ushort v5, v2, s[32:35], 0 offen\nbuffer_load_ushort v6, v2, s[36:39], 0 offen")
    a("buffer_load_ushort v7, v2, s[40:43], 0 offen\nbuffer_load_ushort v9, v3, s[48:51], 0 offen")
    a("s_cmp_eq_u32 s24, 0")
    a(f"s_mov_b32 s57, {fl(16.0)}\ns_cselect_b32 s56, 1.0, 4.0\ns_cselect_b32 s57, s57, {fl(64.0)}\ns_cselect_b32 s58, 0, {fl(512.0)}")
    RP = 528; CH = 96*RP
    a(f"s_mul_i32 s59, s21, {CH}")
    a(f"s_mul_i32 s60, s24, {16*RP}\ns_add_u32 s60, s60, s59")
    a(f"s_mul_i32 s61, s24, {32*RP}\ns_add_u32 s61, s61, s59\ns_add_u32 s61, s61, {32*RP}")
    a("v_lshlrev_b32 v10, 2, v1\nv_add_u32 v11, s61, v10\nv_add_u32 v10, s60, v10")
    a("s_lshl_b32 s62, s22, 6\nv_add_u32 v60, s62, v0\nv_lshlrev_b32 v60, 3, v60")
    for jj in range(8):
        r = 64+jj
        a(f"v_add_u32 v{r}, {jj}, v60\nv_cvt_f32_u32 v{r}, v{r}\nv_cvt_pk_bf16_f32 v{r}, v{r}, v{r}\nv_lshlrev_b32 v{r}, 16, v{r}\nv_cvt_u32_f32 v{r}, v{r}")
        a(f"v_add_u32 v61, 0x600, v{r}\nv_lshrrev_b32 v61, 2, v61\nv_cmp_gt_u32 vcc, 0x200, v{r}\ns_nop 1\nv_cndmask_b32 v{r}, v61, v{r}, vcc")
        a(f"v_lshlrev_b32 v{r}, 2, v{r}\nv_add_u32 v{r}, s59, v{r}")
    a("s_waitcnt vmcnt(0)")
    for r in (4, 5, 6, 7, 8, 9): a(f"v_lshlrev_b32 v{r}, 16, v{r}")
    import math
    l2e_hi = struct.unpack('<f', struct.pack('<f', LOG2E))[0]
    l2e_lo = LOG2E - l2e_hi
    a(f"s_mov_b32 s63, {fl(l2e_hi)}\ns_mov_b32 s64, {fl(l2e_lo*math.log(2))}\ns_mov_b32 s65, {fl(math.log(2))}")
    def expbf(x, t0, t1):
        a(f"v_mul_f32 v{t0}, s63, v{x}\nv_fma_f32 v{t1}, s63, v{x}, -v{t0}\nv_exp_f32 v{t0}, v{t0}\nv_mul_f32 v{t1}, s65, v{t1}")
        a(f"v_fmac_f32 v{t1}, s64, v{x}\nv_fma_f32 v{x}, v{t0}, v{t1}, v{t0}\nv_cvt_pk_bf16_f32 v{x}, v{x}, v{x}\nv_lshlrev_b32 v{x}, 16, v{x}")
    expbf(8, 12, 13)
    expbf(4, 14, 15)
    a(f"v_mul_f32 v4, v4, v8\nv_mul_f32 v5, v5, v8\nv_mul_f32 v6, v6, v8\nv_mul_f32 v7, v7, v8")
    a(f"v_mul_f32 v4, {fl(-LOG2E)}, v4\nv_mul_f32 v5, 0.15915494, v5\nv_add_f32 v6, v6, v6\nv_add_f32 v7, v7, v7")
    def cis(sreg, re, im, t0, t1):
        a(f"v_mul_f32 v{t0}, {sreg}, v4\nv_mul_f32 v{t1}, {sreg}, v5\nv_exp_f32 v{t0}, v{t0}\nv_fract_f32 v{t1}, v{t1}")
        a(f"s_nop 0\nv_cos_f32 v{re}, v{t1}\nv_sin_f32 v{im}, v{t1}\ns_nop 0\nv_mul_f32 v{re}, v{re}, v{t0}\nv_mul_f32 v{im}, v{im}, v{t0}")
    cis("s56", 16, 17, 12, 13)
    cis("s57", 18, 19, 14, 15)
    cis("s58", 20, 21, 12, 13)
    a("v_mul_f32 v22, v6, v20\nv_mul_f32 v23, v6, v21\nv_fma_f32 v22, -v7, v21, v22\nv_fmac_f32 v23, v7, v20")
    a("v_mov_b32 v24, 1.0\nv_mov_b32 v25, 0")
    X = [(22, 23), (26, 27)]; Y = [(24, 25), (28, 29)]
    for s in range(32):
        xc, xn_ = X[s & 1], X[(s+1) & 1]
        t = 30 + (s & 1)*2
        a(f"v_cvt_pk_bf16_f32 v{t}, v{xc[0]}, -v{xc[1]}")
        if s < 16:
            yc, yn = Y[s & 1], Y[(s+1) & 1]
            a(f"v_cvt_pk_bf16_f32 v{t+1}, v{yc[0]}, v{yc[1]}")
        if s < 31:
            a(f"v_mul_f32 v{xn_[0]}, v{xc[0]}, v18\nv_mul_f32 v{xn_[1]}, v{xc[0]}, v19")
        a(f"ds_write_b32 v11, v{t} offset:{s*RP}")
        if s < 16:
            if s < 15: a(f"v_mul_f32 v{yn[0]}, v{yc[0]}, v16\nv_mul_f32 v{yn[1]}, v{yc[0]}, v17")
            a(f"ds_write_b32 v10, v{t+1} offset:{s*RP}")
        if s < 31:
            a(f"v_fma_f32 v{xn_[0]}, -v{xc[1]}, v19, v{xn_[0]}\nv_fmac_f32 v{xn_[1]}, v{xc[1]}, v18")
        if s < 15:
            a(f"v_fma_f32 v{yn[0]}, -v{yc[1]}, v17, v{yn[0]}\nv_fmac_f32 v{yn[1]}, v{yc[1]}, v16")
    a("v_and_b32 v12, 15, v0\nv_lshrrev_b32 v13, 4, v0")
    a(f"v_mul_u32_u24 v14, {RP}, v12\nv_lshlrev_b32 v15, 4, v13\nv_add_u32 v14, v14, v15")
    a(f"s_lshr_b32 s60, s22, 1\ns_mul_i32 s60, s60, {16*RP}\ns_add_u32 s60, s60, s59")
    a(f"s_mul_i32 s61, s22, {16*RP}\ns_add_u32 s61, s61, s59\ns_add_u32 s61, s61, {32*RP}")
    a("v_add_u32 v15, s61, v14\nv_add_u32 v14, s60, v14")
    a("s_lshl_b32 s62, s22, 10\ns_add_u32 s62, s62, s59\nv_lshlrev_b32 v12, 6, v12\nv_lshlrev_b32 v13, 4, v13\nv_add_u32 v12, v12, v13\nv_add_u32 v12, s62, v12")
    a("s_waitcnt lgkmcnt(0)\ns_barrier")
    for t in range(8):
        a(f"ds_read_b128 v[{72+4*t}:{75+4*t}], v14 offset:{64*t}\nds_read_b128 v[{104+4*t}:{107+4*t}], v15 offset:{64*t}")
    for t in range(8):
        a(f"s_waitcnt lgkmcnt({14-2*t})")
        c = "0" if t == 0 else "v[16:19]"
        a(f"v_mfma_f32_16x16x32_bf16 v[16:19], v[{72+4*t}:{75+4*t}], v[{104+4*t}:{107+4*t}], {c}")
    a("s_barrier")
    a("s_nop 7\nds_write_b128 v12, v[16:19]\ns_waitcnt lgkmcnt(0)\ns_barrier")
    for jj in range(8):
        a(f"ds_read_b32 v{24+jj}, v{64+jj}")
    a("v_cmp_eq_u32 vcc, 0, v60\ns_nop 1\nv_cndmask_b32 v9, 0, v9, vcc\ns_waitcnt lgkmcnt(0)\nv_add_f32 v24, v24, v9")
    for i in range(4): a(f"v_cvt_pk_bf16_f32 v{32+i}, v{24+2*i}, v{25+2*i}")
    a("v_lshlrev_b32 v60, 1, v60\ns_lshl_b32 s26, s20, 12\nbuffer_store_dwordx4 v[32:35], v60, s[52:55], s26 offen")
    a.label("P_end")
    a("s_endpgm")
    return khead("prep_kernel") + a.text(), kdesc("prep_kernel", 168, 80, 168)
```

```python
import sys
from common import *
import prep
def build(which=("prep",), out=None):
    launches = []; code = []; descs = []
    if "prep" in which:
        c, d = prep.gen_prep(); code.append(c); descs.append(d)
        launches.append("; @launch kernel=prep_kernel grid=(256,1,1) block=(768,1,1) lds=163840")
    if "g1" in which:
        import gemm1
        c, d = gemm1.gen(); code.append(c); descs.append(d)
        launches.append("; @launch kernel=g1_kernel grid=(256,1,1) block=(256,1,1) lds=%d" % gemm1.LDS)
    if "g2" in which:
        import gemm2
        c, d = gemm2.gen(); code.append(c); descs.append(d)
        launches.append("; @launch kernel=g2_kernel grid=(256,1,1) block=(256,1,1) lds=%d" % gemm2.LDS)
    if "fin" in which:
        import final
        c, d = final.gen(); code.append(c); descs.append(d)
        launches.append("; @launch kernel=fin_kernel grid=(256,1,1) block=(576,1,1) lds=%d" % final.LDS)
    hdr = open('cdna_kernels/' + KNAME + '.s.ref').read().split('\n')
    head = [l for l in hdr if l.startswith(';') and '@launch' not in l and 'Override' not in l and 'grid=ceil' not in l and 'v1 =' not in l]
    head = [l for l in head if l.startswith('; Kernarg') or l.startswith(';   offset')]
    txt = '\n'.join(head) + '\n' + '\n'.join(launches) + '\n'
    txt += '.amdgcn_target "amdgcn-amd-amdhsa--gfx950"\n.text\n' + '\n'.join(code)
    txt += '.section .rodata,"a"\n' + ''.join('.p2align 6\n' + d for d in descs)
    if out: open(out, 'w').write(txt)
    return txt
if __name__ == '__main__':
    which = sys.argv[2].split(',') if len(sys.argv) > 2 else ("prep", "g1", "g2", "fin")
    t = build(which, sys.argv[1])
    print(len(t), 'bytes')
```

```python
import build, re, sys
from common import *
base = build.build(("prep","g1","g2","fin"))
def variant(add_nop, order):
    lines = base.split('\n')
    idx = [i for i,l in enumerate(lines) if '@launch' in l]
    launch = [lines[i] for i in idx]
    lines[idx[0]:idx[-1]+1] = order(launch)
    t = '\n'.join(lines)
    if add_nop:
        t = t.replace('.section .rodata,"a"', khead('nop_kernel') + '    s_endpgm\n.section .rodata,"a"', 1)
        t += '.p2align 6\n' + kdesc('nop_kernel', 8, 16, 8)
    return t
nop = "; @launch kernel=nop_kernel grid=(256,1,1) block=(64,1,1) lds=0"
open('v_nop1.s','w').write(variant(True, lambda l: l+[nop]))
open('v_nop4.s','w').write(variant(True, lambda l: l+[nop]*4))
open('v_prep2.s','w').write(variant(False, lambda l: [l[0],l[0],l[1],l[2],l[3]]))
open('v_g12.s','w').write(variant(False, lambda l: [l[0],l[1],l[1],l[2],l[3]]))
open('v_g22.s','w').write(variant(False, lambda l: [l[0],l[1],l[2],l[2],l[3]]))
open('v_fin2.s','w').write(variant(False, lambda l: [l[0],l[1],l[2],l[3],l[3]]))
```

```python
KNAME = "parallel_sum__ssm_conv_s4d__swiglu_ffn__prompt"
L, D, F, NS = 2048, 576, 4608, 128
A_X, A_LOGA, A_AIM, A_CR, A_CI, A_LDT, A_DSK, A_BX, A_WG, A_WU, A_WD, A_OUT, A_DBG, A_WS = [8*i for i in range(14)]
X_BYTES = L*D*2
PAR_BYTES = D*NS*2
W_BYTES = D*F*2
KR_PITCH = 4160
XR_PITCH = KR_PITCH
WS_XF = 0
WS_KR = WS_XF + 128*18*1024
WS_XT = WS_KR + 2*D*KR_PITCH
WS_Y  = WS_XT + D*4096
WS_H  = WS_Y + D*4096
WS_P  = WS_H + 8*128*18*1024
WS_CNT = WS_P + 8*4*8*9*8*1024
CNT_A, CNT_B, CNT_Y = 0, 64*128, 96*128
CNT_BYTES = 104*128
WS_END = WS_CNT + CNT_BYTES
WS_BYTES = 268435456
LOG2E = 1.4426950408889634

import struct
def f2u(x):
    return struct.unpack('<I', struct.pack('<f', x))[0]
def fl(x):
    return "0x%08x" % f2u(x)

class Asm:
    def __init__(self):
        self.L = []
    def __call__(self, s):
        for ln in s.split('\n'):
            ln = ln.strip()
            if ln: self.L.append(ln)
    def label(self, n): self.L.append(n + ':')
    def text(self):
        out = []
        for l in self.L:
            out.append(l if l.endswith(':') or l.startswith('.') or l.startswith(';') else '    ' + l)
        return '\n'.join(out) + '\n'

def srd(a, s, ptr, nbytes, add=0):
    if add:
        a(f"s_add_u32 s{s}, s{ptr}, {add}\ns_addc_u32 s{s+1}, s{ptr+1}, 0")
    else:
        a(f"s_mov_b32 s{s}, s{ptr}\ns_mov_b32 s{s+1}, s{ptr+1}")
    a(f"s_mov_b32 s{s+2}, {nbytes}\ns_mov_b32 s{s+3}, 0x00020000")

def kdesc(name, vgpr, sgpr, accum):
    return f""".amdhsa_kernel {name}
  .amdhsa_next_free_vgpr {vgpr}
  .amdhsa_next_free_sgpr {sgpr}
  .amdhsa_accum_offset {accum}
  .amdhsa_group_segment_fixed_size 0
  .amdhsa_kernarg_size 112
  .amdhsa_user_sgpr_count 2
  .amdhsa_user_sgpr_kernarg_segment_ptr 1
  .amdhsa_system_sgpr_workgroup_id_x 1
  .amdhsa_float_denorm_mode_32 3
.end_amdhsa_kernel
"""
def khead(name):
    return f""".globl {name}
.p2align 8
.type {name},@function
{name}:
"""

import os
DIAG = os.environ.get('DIAG', '0') == '1'
WS_DIAG = 128*1024*1024
class Stamps:
    def __init__(self, a, kidx, base=66, wait=True):
        self.a, self.k, self.base, self.n = a, kidx, base, 0
    def stamp(self, real=False):
        if not DIAG: return
        r = self.base + 2*self.n; self.n += 1
        assert r + 1 <= 99
        self.a(f"{'s_memrealtime' if real else 's_memtime'} s[{r}:{r+1}]\ns_waitcnt lgkmcnt(0)")
    def dump(self, ws_lo, wave_sreg, vt0, vt1, srd_reg):
        if not DIAG: return
        a = self.a
        a(f"s_waitcnt vmcnt(0) lgkmcnt(0)")
        srd(a, srd_reg, ws_lo, 16*1024*1024, WS_DIAG)
        a(f"s_lshl_b32 s64, s2, 4\ns_add_u32 s64, s64, s{wave_sreg}\ns_add_u32 s64, s64, {self.k*4096}\ns_lshl_b32 s64, s64, 7")
        a(f"v_mov_b32 v{vt0}, s64")
        for i in range(self.n):
            r = self.base + 2*i
            a(f"v_mov_b32 v{vt1}, s{r}\nbuffer_store_dword v{vt1}, v{vt0}, s[{srd_reg}:{srd_reg+3}], 0 offen offset:{4*i}\ns_nop 1")
        a("s_waitcnt vmcnt(0)")
```

```python
from common import *
LDS = 9*1024
def gen():
    a = Asm(); st = Stamps(a, 3)
    a("s_cmp_ge_u32 s2, 256\ns_cbranch_scc1 FN_end")
    st.stamp(True); st.stamp()
    a(f"s_load_dwordx2 s[4:5], s[0:1], {A_WS}\ns_load_dwordx2 s[6:7], s[0:1], {A_X}\ns_load_dwordx2 s[8:9], s[0:1], {A_OUT}")
    a("v_lshrrev_b32 v1, 6, v0\nv_and_b32 v0, 63, v0")
    a("s_and_b32 s52, s2, 7\ns_bfe_u32 s54, s2, 0x20003\ns_lshr_b32 s53, s2, 5\nv_readfirstlane_b32 s3, v1")
    a("v_lshlrev_b32 v1, 4, v0")
    a("v_and_b32 v2, 15, v0\nv_mul_u32_u24 v2, 1152, v2\nv_lshrrev_b32 v3, 4, v0\nv_lshl_add_u32 v2, v3, 3, v2")
    a("s_lshl_b32 s55, s53, 8\ns_lshl_b32 s56, s52, 5\ns_add_u32 s55, s55, s56")
    a("s_mul_i32 s56, s54, 144\ns_lshl_b32 s57, s3, 4\ns_add_u32 s56, s56, s57")
    a("s_mul_i32 s57, s55, 1152\ns_lshl_b32 s58, s56, 1\ns_add_u32 s57, s57, s58\ns_add_u32 s58, s57, 18432")
    a("s_lshl_b32 s59, s53, 2\ns_add_u32 s59, s59, s54\ns_lshl_b32 s59, s59, 3\ns_add_u32 s59, s59, s52\ns_mul_i32 s59, s59, 9\ns_add_u32 s59, s59, s3\ns_lshl_b32 s59, s59, 13")
    a("v_lshrrev_b32 v4, 2, v0\nv_lshlrev_b32 v4, 12, v4\nv_and_b32 v5, 3, v0\nv_lshl_add_u32 v4, v5, 4, v4")
    a("s_lshl_b32 s60, s56, 12\ns_lshl_b32 s61, s55, 1\ns_add_u32 s60, s60, s61\ns_lshl_b32 s61, s3, 10")
    a("v_bfe_u32 v5, v0, 2, 2\nv_lshl_add_u32 v5, v3, 2, v5\nv_lshlrev_b32 v5, 6, v5\nv_and_b32 v6, 3, v0\nv_lshl_add_u32 v5, v6, 3, v5\nv_add_u32 v5, s61, v5")
    a("s_waitcnt lgkmcnt(0)")
    srd(a, 12, 4, WS_END-WS_P, WS_P)
    srd(a, 16, 4, D*4096, WS_Y)
    srd(a, 20, 6, X_BYTES)
    srd(a, 24, 8, X_BYTES)
    a("s_mov_b32 m0, s61")
    a("buffer_load_dwordx2 v[8:9], v2, s[20:23], s57 offen\nbuffer_load_dwordx2 v[10:11], v2, s[20:23], s58 offen")
    a("buffer_load_dwordx4 v4, s[16:19], s60 offen lds")
    for s in range(8):
        if s == 4: a("s_add_u32 s59, s59, 4096")
        a(f"buffer_load_dwordx4 v[{16+4*s}:{19+4*s}], v1, s[12:15], s59 offen offset:{1024*(s&3)}")
    a("s_waitcnt vmcnt(8)")
    a("ds_read_b64_tr_b16 v[12:13], v5\nds_read_b64_tr_b16 v[14:15], v5 offset:32")
    for th in range(2):
        for j in range(2):
            a(f"v_lshlrev_b32 v{48+4*th+2*j}, 16, v{8+2*th+j}\nv_and_b32 v{49+4*th+2*j}, 0xffff0000, v{8+2*th+j}")
    a("s_waitcnt lgkmcnt(0)")
    for th in range(2):
        for j in range(2):
            a(f"v_lshlrev_b32 v56, 16, v{12+2*th+j}\nv_and_b32 v57, 0xffff0000, v{12+2*th+j}")
            a(f"v_add_f32 v{48+4*th+2*j}, v{48+4*th+2*j}, v56\nv_add_f32 v{49+4*th+2*j}, v{49+4*th+2*j}, v57")
    for s in range(8):
        a(f"s_waitcnt vmcnt({7-s})")
        for d in range(4):
            r = 16+4*s+d
            a(f"v_lshlrev_b32 v56, 16, v{r}\nv_and_b32 v57, 0xffff0000, v{r}")
            a(f"v_add_f32 v{48+2*d}, v{48+2*d}, v56\nv_add_f32 v{49+2*d}, v{49+2*d}, v57")
    for d in range(4): a(f"v_cvt_pk_bf16_f32 v{8+d}, v{48+2*d}, v{49+2*d}")
    a("buffer_store_dwordx2 v[8:9], v2, s[24:27], s57 offen\nbuffer_store_dwordx2 v[10:11], v2, s[24:27], s58 offen")
    st.stamp(); st.stamp(True); st.dump(4, 3, 60, 61, 28)
    a.label("FN_end")
    a("s_endpgm")
    return khead("fin_kernel") + a.text(), kdesc("fin_kernel", 64, 102 if DIAG else 80, 64)
```

```python
from common import *

RING = 0
CONV = 65536
CONV_CH = 4*XR_PITCH + 512 + 4096
LDS = CONV + 3*CONV_CH

V_L16, V_WA, V_WB, V_S1, V_S2, V_DP, V_DS, V_H, V_CA, V_CB, V_CY, V_T0, V_T1, V_T2 = range(1, 15)
XV = 16
ACC = [48, 112]
WF = 176
TMP = 200
ST = 232
C_ACC = 48; C_A = [80, 144]; C_B = [112, 176]; C_PK = 208
S_W = 3
SRD_W, SRD_XF, SRD_H, SRD_XR, SRD_KQ, SRD_Y = 12, 16, 20, 24, 28, 32
S_WM0P, S_WM0S, S_SRC, S_X0, S_X1, S_HQ0, S_HQ1, S_HS0, S_HS1, S_NL2E, S_T, S_T2, S_CH, S_COLP, S_COLS, S_CB = range(36, 52)

class VQ:
    def __init__(s): s.q = []
    def issue(s, tag): s.q.append(tag)
    def wait_n(s, tag):
        idx = max(i for i, t in enumerate(s.q) if t == tag)
        return len(s.q) - 1 - idx

def xreg(ct, t):
    if t < 32: b = (2*t+ct)*4; return f"a[{b}:{b+3}]"
    b = XV + (2*(t-32)+ct)*4; return f"v[{b}:{b+3}]"

def dma_items(GG):
    slot = GG % 8; p = GG // 9; G = GG % 9
    items = []
    if p < 4:
        for i in range(2):
            items.append([f"s_add_u32 m0, s{S_WM0P}, {slot*8192 + 2048*i}",
                          f"s_add_u32 s{S_T}, s{S_COLP}, {(64*G + 16*i)*9216 + 64*p}",
                          f"buffer_load_dwordx4 v{V_DP}, s[{SRD_W}:{SRD_W+3}], s{S_T} offen lds"])
    else:
        items.append([f"s_add_u32 m0, s{S_WM0S}, {slot*8192}",
                      f"s_add_u32 s{S_T}, s{S_COLS}, {64*G*9216}",
                      f"buffer_load_dwordx4 v{V_DS}, s[{SRD_W}:{SRD_W+3}], s{S_T} offen lds"])
    return items

def xload_items(G):
    items = []
    for kk in range(4):
        t = 4*G + kk
        for ct in range(2):
            sx = S_X0 if ct == 0 else S_X1
            items.append([f"buffer_load_dwordx4 {xreg(ct,t)}, v{V_L16}, s[{SRD_XF}:{SRD_XF+3}], s{sx} offen offset:{1024*kk}"])
    items.append([f"s_add_u32 s{S_X0}, s{S_X0}, 4096", f"s_add_u32 s{S_X1}, s{S_X1}, 4096"])
    return items

def reads_for_step(gstep):
    p = gstep // 36; t = gstep % 36
    GG = 9*p + t//4; kk = t % 4; slot = GG % 8
    wf = WF + 8*(gstep % 3)
    if p < 4:
        o = slot*8192 + kk*2048
        return [f"ds_read_b64_tr_b16 v[{wf}:{wf+1}], v{V_WA} offset:{o}",
                f"ds_read_b64_tr_b16 v[{wf+2}:{wf+3}], v{V_WA} offset:{o+256}",
                f"ds_read_b64_tr_b16 v[{wf+4}:{wf+5}], v{V_WB} offset:{o}",
                f"ds_read_b64_tr_b16 v[{wf+6}:{wf+7}], v{V_WB} offset:{o+256}"]
    o = slot*8192 + (kk >> 1)*2048 + (kk & 1)*512
    return [f"ds_read_b64_tr_b16 v[{wf}:{wf+1}], v{V_S1} offset:{o}",
            f"ds_read_b64_tr_b16 v[{wf+2}:{wf+3}], v{V_S2} offset:{o}"]

def epi_unit(R, soff, imm, stset, tb):
    out = []
    S = ST + 4*stset
    for i in range(0, 8, 2):
        T0 = TMP + (tb + i) % 8; T1 = TMP + (tb + i + 1) % 8
        g0, g1, u0, u1 = R+i, R+i+1, R+8+i, R+9+i
        out += [(f"v_mul_f32 v{T0}, s{S_NL2E}, v{g0}", 1), (f"v_mul_f32 v{T1}, s{S_NL2E}, v{g1}", 1),
                (f"v_exp_f32 v{T0}, v{T0}", 2), (f"v_exp_f32 v{T1}, v{T1}", 2),
                (f"v_mul_f32 v{u0}, v{g0}, v{u0}", 1),
                (f"v_add_f32 v{T0}, 1.0, v{T0}", 1), (f"v_add_f32 v{T1}, 1.0, v{T1}", 1),
                (f"v_rcp_f32 v{T0}, v{T0}", 2), (f"v_rcp_f32 v{T1}, v{T1}", 2),
                (f"v_mul_f32 v{u1}, v{g1}, v{u1}", 1),
                (f"v_mul_f32 v{u0}, v{u0}, v{T0}", 1), (f"v_mul_f32 v{u1}, v{u1}, v{T1}", 1),
                (f"v_cvt_pk_bf16_f32 v{S+i//2}, v{u0}, v{u1}", 1)]
    out.append((f"buffer_store_dwordx4 v[{S}:{S+3}], v{V_H}, s[{SRD_H}:{SRD_H+3}], s{soff} offen offset:{imm}", 1, 'st'))
    return out

def epi_stream(p):
    base = ACC[p % 2]; out = []; n = 0
    if p < 4:
        for ch in range(2):
            for ct in range(2):
                out += epi_unit(base + (2*ch+ct)*16, S_HQ0 if ct == 0 else S_HQ1, (2*p+ch)*512, n % 2, 0); n += 1
    else:
        for ct in range(2):
            out += epi_unit(base + ct*16, S_HS0 if ct == 0 else S_HS1, 0, n % 2, 0); n += 1
    return out

def gen(do_conv=True):
    a = Asm(); vq = VQ(); st = Stamps(a, 1)
    a("s_cmp_ge_u32 s2, 256\ns_cbranch_scc1 G1_end")
    st.stamp(True); st.stamp()
    a(f"s_load_dwordx2 s[4:5], s[0:1], {A_WS}\ns_load_dwordx2 s[6:7], s[0:1], {A_WG}\ns_load_dwordx2 s[8:9], s[0:1], {A_WU}")
    a(f"v_lshrrev_b32 v{V_T0}, 6, v0\nv_and_b32 v0, 63, v0\ns_and_b32 s52, s2, 7\ns_lshr_b32 s53, s2, 3")
    a(f"v_readfirstlane_b32 s{S_W}, v{V_T0}\ns_and_b32 s54, s53, 3\ns_lshr_b32 s53, s53, 2")
    a(f"v_lshlrev_b32 v{V_L16}, 4, v0")
    a(f"v_lshrrev_b32 v{V_T0}, 4, v0\nv_and_b32 v{V_T1}, 1, v{V_T0}\nv_lshrrev_b32 v{V_T0}, 1, v{V_T0}")
    a(f"v_bfe_u32 v{V_T2}, v0, 2, 2\nv_lshl_add_u32 v{V_T0}, v{V_T0}, 3, v{V_T2}")
    a(f"v_and_b32 v{V_T2}, 3, v0\nv_lshlrev_b32 v{V_T2}, 3, v{V_T2}\nv_lshl_add_u32 v{V_T2}, v{V_T1}, 10, v{V_T2}")
    a(f"v_lshl_add_u32 v{V_WA}, v{V_T0}, 6, v{V_T2}\nv_lshl_add_u32 v{V_WA}, v{V_T1}, 5, v{V_WA}")
    a(f"v_xor_b32 v{V_WB}, 32, v{V_WA}")
    a(f"v_lshl_add_u32 v{V_S1}, v{V_T0}, 5, v{V_T2}\nv_lshl_add_u32 v{V_S1}, v{V_T1}, 7, v{V_S1}")
    a(f"v_lshlrev_b32 v{V_T1}, 8, v{V_T1}\nv_sub_u32 v{V_S2}, v{V_S1}, v{V_T1}\nv_add_u32 v{V_S2}, 128, v{V_S2}")
    a(f"s_and_b32 s55, s{S_W}, 1\ns_lshr_b32 s56, s{S_W}, 1")
    a(f"v_lshrrev_b32 v{V_T0}, 2, v0\nv_mul_u32_u24 v{V_DP}, 9216, v{V_T0}\nv_and_b32 v{V_T0}, 3, v0")
    a(f"s_lshl_b32 s57, s55, 1\nv_xor_b32 v{V_T0}, s57, v{V_T0}\nv_lshl_add_u32 v{V_DP}, v{V_T0}, 4, v{V_DP}")
    a(f"v_lshrrev_b32 v{V_T0}, 1, v0\ns_lshl_b32 s57, s55, 2\nv_xor_b32 v{V_T0}, s57, v{V_T0}\nv_mul_u32_u24 v{V_DS}, 9216, v{V_T0}")
    a(f"v_and_b32 v{V_T0}, 1, v0\nv_lshl_add_u32 v{V_DS}, v{V_T0}, 4, v{V_DS}")
    a(f"v_bfe_u32 v{V_T0}, v0, 4, 1\nv_mul_u32_u24 v{V_H}, 18432, v{V_T0}\nv_lshrrev_b32 v{V_T0}, 5, v0\nv_lshl_add_u32 v{V_H}, v{V_T0}, 8, v{V_H}")
    a(f"v_and_b32 v{V_T0}, 15, v0\nv_lshl_add_u32 v{V_H}, v{V_T0}, 4, v{V_H}")
    a(f"s_lshl_b32 s{S_WM0P}, s56, 12\ns_lshl_b32 s57, s55, 10\ns_add_u32 s{S_WM0P}, s{S_WM0P}, s57")
    a(f"s_lshl_b32 s{S_WM0S}, s56, 11\ns_add_u32 s{S_WM0S}, s{S_WM0S}, s57")
    a(f"s_mul_i32 s58, s52, 1152\ns_mul_i32 s59, s54, 288\ns_add_u32 s58, s58, s59\ns_and_b32 s60, s54, 1")
    a(f"s_mul_i32 s59, s56, {32*9216}\ns_add_u32 s58, s58, s59")
    a(f"s_lshl_b32 s61, s60, 5\ns_add_u32 s{S_COLP}, s58, s61")
    a(f"s_xor_b32 s61, s60, 1\ns_lshl_b32 s61, s61, 8\ns_add_u32 s{S_COLS}, s58, s61")
    a(f"s_lshl_b32 s59, s53, 3\ns_lshl_b32 s61, s{S_W}, 1\ns_add_u32 s59, s59, s61\ns_mul_i32 s{S_X0}, s59, 36864\ns_add_u32 s{S_X1}, s{S_X0}, 36864")
    a(f"s_lshl_b32 s59, s52, 7\ns_lshl_b32 s61, s53, 4\ns_add_u32 s59, s59, s61\ns_lshl_b32 s61, s{S_W}, 2\ns_add_u32 s59, s59, s61")
    a(f"s_mul_i32 s59, s59, 18432\ns_mul_i32 s61, s54, 4608\ns_add_u32 s59, s59, s61")
    a(f"s_lshl_b32 s61, s60, 9\ns_add_u32 s{S_HQ0}, s59, s61\ns_add_u32 s{S_HQ1}, s{S_HQ0}, 36864")
    a(f"s_xor_b32 s61, s60, 1\ns_lshl_b32 s61, s61, 12\ns_add_u32 s{S_HS0}, s59, s61\ns_add_u32 s{S_HS1}, s{S_HS0}, 36864")
    a(f"s_mov_b32 s{S_NL2E}, {fl(-LOG2E)}")
    a("s_waitcnt lgkmcnt(0)")
    a(f"s_cmp_eq_u32 s55, 0\ns_cselect_b32 s{SRD_W}, s6, s8\ns_cselect_b32 s{SRD_W+1}, s7, s9\ns_mov_b32 s{SRD_W+2}, {W_BYTES}\ns_mov_b32 s{SRD_W+3}, 0x00020000")
    srd(a, SRD_XF, 4, 64*36*1024, WS_XF)
    srd(a, SRD_H, 4, 8*128*36*512, WS_H)
    stream = []
    for G in range(9):
        if G < 8: stream += [(it, 'W%d' % G) for it in dma_items(G)]
        stream += [(it, 'X%d' % G if it[0].startswith('buffer') else None) for it in xload_items(G)]
    for it, tag in stream:
        if tag: vq.issue(tag)
    if do_conv:
        srd(a, SRD_XR, 4, D*XR_PITCH, WS_XR)
        srd(a, SRD_KQ, 4, D*4096, WS_KQ)
        srd(a, SRD_Y, 4, D*4096, WS_Y)
        a(f"s_min_u32 s59, s2, 64\ns_lshl_b32 s61, s2, 1\ns_add_u32 s{S_CH}, s59, s61\ns_add_u32 s{S_CH}, s{S_CH}, s{S_W}")
        a(f"s_cmp_lt_u32 s2, 64\ns_cselect_b32 s59, 3, 2\ns_cmp_ge_u32 s{S_W}, s59\ns_cbranch_scc1 G1_noconv")
        a(f"s_mul_i32 s{S_CB}, s{S_W}, {CONV_CH}\ns_add_u32 s{S_CB}, s{S_CB}, {CONV}")
        a(f"s_mul_i32 s62, s{S_CH}, {XR_PITCH}\ns_lshl_b32 s63, s{S_CH}, 12")
        for c in range(4):
            for i in range(4):
                a(f"s_add_u32 m0, s{S_CB}, {c*XR_PITCH + 1024*i}\ns_add_u32 s{S_T}, s62, {2*c + 1024*i}")
                a(f"buffer_load_dwordx4 v{V_L16}, s[{SRD_XR}:{SRD_XR+3}], s{S_T} offen lds")
        for i in range(4):
            a(f"s_add_u32 m0, s{S_CB}, {4*XR_PITCH + 512 + 1024*i}\ns_add_u32 s{S_T}, s63, {1024*i}")
            a(f"buffer_load_dwordx4 v{V_L16}, s[{SRD_KQ}:{SRD_KQ+3}], s{S_T} offen lds")
        a(f"v_mov_b32 v{C_PK}, 0\nv_mov_b32 v{C_PK+1}, 0\nv_mov_b32 v{C_PK+2}, 0\nv_mov_b32 v{C_PK+3}, 0")
        a(f"v_add_u32 v{V_T0}, {4*XR_PITCH}, v{V_L16}")
        a(f"v_bfe_u32 v{V_T1}, v0, 2, 2\nv_mul_u32_u24 v{V_T1}, {XR_PITCH}, v{V_T1}\nv_and_b32 v{V_T2}, 3, v0\nv_lshl_add_u32 v{V_T1}, v{V_T2}, 4, v{V_T1}\nv_add_u32 v{V_T1}, 4096, v{V_T1}")
        a(f"v_cmp_gt_u32 vcc, 32, v0\ns_nop 1\nv_cndmask_b32 v{V_T0}, v{V_T1}, v{V_T0}, vcc\nv_add_u32 v{V_T0}, s{S_CB}, v{V_T0}")
        a(f"ds_write_b128 v{V_T0}, v[{C_PK}:{C_PK+3}]")
        a(f"v_and_b32 v{V_T0}, 3, v0\nv_sub_u32 v{V_T0}, 3, v{V_T0}\nv_mul_u32_u24 v{V_CA}, {XR_PITCH}, v{V_T0}")
        a(f"v_bfe_u32 v{V_T0}, v0, 2, 2\nv_lshlrev_b32 v{V_T0}, 3, v{V_T0}\nv_sub_u32 v{V_CA}, v{V_CA}, v{V_T0}")
        a(f"v_bfe_u32 v{V_T0}, v0, 4, 1\nv_lshlrev_b32 v{V_T0}, 4, v{V_T0}\nv_lshrrev_b32 v{V_T1}, 5, v0\nv_lshlrev_b32 v{V_T1}, 5, v{V_T1}\nv_sub_u32 v{V_T0}, v{V_T0}, v{V_T1}")
        a(f"v_add_u32 v{V_CA}, v{V_CA}, v{V_T0}\nv_add_u32 v{V_CA}, {4088 - 512*7 - 32*14}, v{V_CA}\nv_add_u32 v{V_CA}, s{S_CB}, v{V_CA}")
        a(f"v_and_b32 v{V_T1}, 15, v0\nv_lshl_add_u32 v{V_CB}, v{V_T1}, 5, v{V_T0}\nv_add_u32 v{V_CB}, {4*XR_PITCH + 64}, v{V_CB}\nv_add_u32 v{V_CB}, s{S_CB}, v{V_CB}")
        a(f"v_lshlrev_b32 v{V_CY}, 5, v{V_T1}\nv_lshrrev_b32 v{V_T1}, 4, v0\nv_lshl_add_u32 v{V_CY}, v{V_T1}, 3, v{V_CY}")
        NPRE = 22
        npre_vm = 0
        for it, tag in stream[:NPRE]:
            for ins in it: a(ins)
            if tag: npre_vm += 1
        n_save = st.n
        st.stamp()
        a(f"s_waitcnt vmcnt({npre_vm}) lgkmcnt(0)")
        st.stamp()
        def creads(rho):
            k0 = 2*rho; A = C_A[rho & 1]; B = C_B[rho & 1]; out = []
            for p in range(8):
                o = 512*(7-p) + 32*(14-k0)
                ob = 512*p + 32*(14-k0)
                out.append(f"ds_read_b128 v[{B+4*p}:{B+4*p+3}], v{V_CB} offset:{ob}")
                out.append(f"ds_read_b64 v[{A+4*p}:{A+4*p+1}], v{V_CA} offset:{o}")
                out.append(f"ds_read_b64 v[{A+4*p+2}:{A+4*p+3}], v{V_CA} offset:{o+8}")
            return out
        for ins in creads(0): a(ins)
        rest = [ins for it, tag in stream[NPRE:] for ins in [it]]
        ri = 0
        nrest = len(rest)
        gap_no = 0
        for rho in range(8):
            A = C_A[rho & 1]; B = C_B[rho & 1]
            nxt = creads(rho+1) if rho < 7 else []
            a("s_waitcnt lgkmcnt(0)")
            gi = 0
            for p in range(8):
                for c in range(p, 8):
                    acc = C_ACC + 4*c
                    cc = "0" if (rho == 0 and p == 0) else f"v[{acc}:{acc+3}]"
                    a(f"v_mfma_f32_16x16x32_bf16 v[{acc}:{acc+3}], v[{A+4*p}:{A+4*p+3}], v[{B+4*(c-p)}:{B+4*(c-p)+3}], {cc}")
                    if gi < len(nxt): a(nxt[gi])
                    else:
                        want = (nrest * (gap_no+1)) // (8*12)
                        while ri < min(want, nrest):
                            for ins in rest[ri]: a(ins)
                            ri += 1
                        gap_no += 1
                    gi += 1
            if rho == 7:
                pass
        while ri < nrest:
            for ins in rest[ri]: a(ins)
            ri += 1
        st.stamp()
        a(f"s_lshl_b32 s63, s{S_CH}, 12\ns_nop 7")
        for c in range(8):
            acc = C_ACC + 4*c; pk = C_PK + 2*(c % 4)
            a(f"v_cvt_pk_bf16_f32 v{pk}, v{acc}, v{acc+1}\nv_cvt_pk_bf16_f32 v{pk+1}, v{acc+2}, v{acc+3}")
            a(f"buffer_store_dwordx2 v[{pk}:{pk+1}], v{V_CY}, s[{SRD_Y}:{SRD_Y+3}], s63 offen offset:{512*c}")
        a("s_branch G1_join")
        a.label("G1_noconv")
        st.n = n_save; st.stamp(); st.stamp(); st.stamp()
    for it, tag in stream:
        for ins in it: a(ins)
    a.label("G1_join")
    st.stamp()
    NSTEP = 180
    def step_info(gs):
        p = gs // 36; t = gs % 36
        return p, t
    a(f"s_waitcnt vmcnt({min(63, vq.wait_n('W0'))})\ns_barrier")
    for gs in (0, 1):
        for ins in reads_for_step(gs): a(ins)
    for p in range(5):
        st.stamp()
        if p in (1, 4): st.stamp(True)
        nm = 4 if p < 4 else 2
        ng = 36*nm
        pre = [[] for _ in range(ng)]; gap = [[] for _ in range(ng)]; cost = [0]*ng
        sim = []
        mf = []
        base = ACC[p % 2]
        for t in range(36):
            gs = 36*p + t; wf = WF + 8*(gs % 3)
            for j in range(nm):
                ch, ct = (j >> 1, j & 1) if p < 4 else (0, j)
                acc = base + (2*ch+ct)*16
                c = "0" if t == 0 else f"v[{acc}:{acc+15}]"
                mf.append(f"v_mfma_f32_32x32x16_bf16 v[{acc}:{acc+15}], v[{wf+4*ch}:{wf+4*ch+3}], {xreg(ct,t)}, {c}")
            if gs + 2 < NSTEP:
                rd = reads_for_step(gs+2)
                for j, ins in enumerate(rd):
                    gj = min(t*nm + j, t*nm + nm - 1) if len(rd) <= nm else t*nm + (j * nm)//len(rd)
                    gap[gj].append(('i', ins)); cost[gj] += 1
            nxt_reads = len(reads_for_step(gs+1)) if gs + 1 < NSTEP else 0
            pre[t*nm].append(('lgkm', nxt_reads))
            GG = 9*p + t//4; kk = t % 4
            if kk == 0 and p == 0:
                pre[t*nm].append(('vmwait', 'X%d' % (t//4)))
            if kk == 2 and GG + 1 < 45:
                pre[t*nm].append(('vmwait', 'W%d' % (GG+1)))
                pre[t*nm].append(('i', 's_barrier'))
                if GG + 7 < 45 and GG + 7 >= 8:
                    for n, it in enumerate(dma_items(GG+7)):
                        gj = t*nm + 1 + n*2 if nm == 4 else t*nm + 1
                        gj = min(gj, ng-1)
                        gap[gj].append(('dma', it, 'W%d' % (GG+7))); cost[gj] += 3
        if p > 0:
            es = epi_stream(p-1)
            tot = sum(e[1] for e in es)
            cap = 5.4
            ei = 0; done = 0.0
            start = 1
            for gi in range(start, ng):
                target = tot * (gi - start + 1) / (ng - start - 2) if ng - start - 2 > 0 else tot
                while ei < len(es) and done + es[ei][1] <= target + 0.5 and cost[gi] + es[ei][1] <= cap + (1 if p == 4 else 0):
                    e = es[ei]; gap[gi].append(('st', e[0]) if len(e) > 2 else ('i', e[0])); cost[gi] += e[1]; done += e[1]; ei += 1
            while ei < len(es):
                e = es[ei]; gap[ng-1].append(('st', e[0]) if len(e) > 2 else ('i', e[0])); ei += 1
        for i in range(ng):
            for it in pre[i]:
                if it[0] == 'i': a(it[1])
                elif it[0] == 'lgkm': a(f"s_waitcnt lgkmcnt({it[1]})")
                elif it[0] == 'vmwait': a(f"s_waitcnt vmcnt({min(63, vq.wait_n(it[1]))})")
            a(mf[i])
            for it in gap[i]:
                if it[0] == 'i': a(it[1])
                elif it[0] == 'st': a(it[1]); vq.issue('st')
                elif it[0] == 'dma':
                    for ins in it[1]: a(ins)
                    vq.issue(it[2])
    st.stamp()
    a("s_nop 7\ns_nop 3")
    for e in epi_stream(4): a(e[0])
    st.stamp(); st.stamp(True); st.dump(4, S_W, 200, 201, 24)
    a.label("G1_end")
    a("s_endpgm")
    return khead("g1_kernel") + a.text(), kdesc("g1_kernel", 512, 102 if DIAG else 80, 256)
```

```python
from common import *
from gemm1 import VQ

SLAB = 9216
NSLOT = 16
LDS = NSLOT*SLAB
V_L16, V_RD, V_T0, V_T1, V_T2 = 1, 2, 3, 4, 5
V_D = 6
HV = 16
ACC = 48
WF = 192
PK = 208
S_W = 3
SRD_WD, SRD_H, SRD_P = 12, 16, 20
S_H0 = 36
S_SRC, S_T, S_PB = 40, 41, 42

def hreg(tau, u):
    if u < 16: b = (u*4+tau)*4; return f"a[{b}:{b+3}]"
    b = HV + ((u-16)*4+tau)*4; return f"v[{b}:{b+3}]"
def accreg(tau, nu): return ACC + (tau*9+nu)*4

def slab_items(rho):
    items = []
    slot0 = (4*rho) % NSLOT
    items.append(('s', [f"s_add_u32 s{S_T}, s{S_SRC}, {4*rho*32*1152}"]))
    for i in range(9):
        items.append(('vm', [f"s_add_u32 m0, s43, {slot0*SLAB + 1024*i}",
                             f"buffer_load_dwordx4 v{V_D+i}, s[{SRD_WD}:{SRD_WD+3}], s{S_T} offen lds"]))
    return items
def h_items(u):
    items = []
    for tau in range(4):
        items.append(('vm', [f"buffer_load_dwordx4 {hreg(tau,u)}, v{V_L16}, s[{SRD_H}:{SRD_H+3}], s{S_H0+tau} offen offset:{1024*(u&3)}"]))
    if (u & 3) == 3:
        items.append(('s', [f"s_add_u32 s{S_H0+tau}, s{S_H0+tau}, 4096" for tau in range(4)]))
    return items
def frag_reads(fi):
    u, nu = divmod(fi, 9)
    slot = u % NSLOT
    wf = WF + 4*(fi % 4)
    base = slot*SLAB + 32*nu
    reg = V_RD if base + 2304 < 65536 else (V_T1 if base - 64512 + 2304 < 65536 else V_T2)
    if reg == V_T1: base -= 64512
    if reg == V_T2: base -= 129024
    return [f"ds_read_b64_tr_b16 v[{wf}:{wf+1}], v{reg} offset:{base}",
            f"ds_read_b64_tr_b16 v[{wf+2}:{wf+3}], v{reg} offset:{base+2304}"]

def gen():
    a = Asm(); vq = VQ(); st = Stamps(a, 2)
    a("s_cmp_ge_u32 s2, 256\ns_cbranch_scc1 G2_end")
    st.stamp(True); st.stamp()
    a(f"s_load_dwordx2 s[4:5], s[0:1], {A_WS}\ns_load_dwordx2 s[6:7], s[0:1], {A_WD}")
    a(f"v_lshrrev_b32 v{V_T0}, 6, v0\nv_and_b32 v0, 63, v0\ns_and_b32 s52, s2, 7\ns_lshr_b32 s53, s2, 3")
    a(f"v_readfirstlane_b32 s{S_W}, v{V_T0}\ns_and_b32 s54, s53, 3\ns_lshr_b32 s53, s53, 2")
    a(f"v_lshlrev_b32 v{V_L16}, 4, v0")
    a(f"s_mov_b32 s55, {(2**32 + 287)//288}")
    for i in range(9):
        a(f"v_add_u32 v{V_T0}, {1024*i}, v{V_L16}\nv_mul_hi_u32 v{V_D+i}, v{V_T0}, s55\nv_mul_u32_u24 v{V_D+i}, {1152-288}, v{V_D+i}\nv_add_u32 v{V_D+i}, v{V_D+i}, v{V_T0}")
    a(f"v_lshrrev_b32 v{V_T0}, 5, v0\nv_lshlrev_b32 v{V_T0}, 4, v{V_T0}\nv_bfe_u32 v{V_RD}, v0, 4, 1\nv_lshl_add_u32 v{V_T0}, v{V_RD}, 2, v{V_T0}")
    a(f"v_bfe_u32 v{V_RD}, v0, 2, 2\nv_add_u32 v{V_T0}, v{V_T0}, v{V_RD}\nv_mul_u32_u24 v{V_T0}, 288, v{V_T0}\nv_and_b32 v{V_RD}, 3, v0\nv_lshl_add_u32 v{V_RD}, v{V_RD}, 3, v{V_T0}")
    a(f"v_add_u32 v{V_T1}, 64512, v{V_RD}\nv_add_u32 v{V_T2}, 129024, v{V_RD}")
    a(f"s_mul_i32 s56, s52, {576*1152}\ns_mul_i32 s57, s54, 288\ns_add_u32 s56, s56, s57\ns_mul_i32 s57, s{S_W}, {32*1152}\ns_add_u32 s{S_SRC}, s56, s57")
    a(f"s_mul_i32 s43, s{S_W}, {SLAB}")
    a(f"s_lshl_b32 s56, s52, 7\ns_lshl_b32 s57, s53, 4\ns_add_u32 s56, s56, s57\ns_lshl_b32 s57, s{S_W}, 2\ns_add_u32 s56, s56, s57\ns_mul_i32 s{S_H0}, s56, 18432")
    for tau in range(1, 4): a(f"s_add_u32 s{S_H0+tau}, s{S_H0}, {18432*tau}")
    a(f"s_lshl_b32 s56, s53, 2\ns_add_u32 s56, s56, s54\ns_lshl_b32 s56, s56, 3\ns_lshl_b32 s57, s{S_W}, 1\ns_add_u32 s56, s56, s57\ns_mul_i32 s56, s56, 72\ns_add_u32 s56, s56, s52\ns_lshl_b32 s{S_PB}, s56, 10")
    a("s_waitcnt lgkmcnt(0)")
    srd(a, SRD_WD, 6, W_BYTES)
    srd(a, SRD_H, 4, 8*128*36*512, WS_H)
    srd(a, SRD_P, 4, WS_END-WS_P, WS_P)
    def emit_items(items, tag):
        for kind, ins in items:
            for i in ins: a(i)
            if kind == 'vm': vq.issue(tag)
    emit_items(slab_items(0), 'S0')
    for u in range(4): emit_items(h_items(u), 'H%d' % u)
    emit_items(slab_items(1), 'S1')
    for u in range(4, 8): emit_items(h_items(u), 'H%d' % u)
    a(f"s_waitcnt vmcnt({vq.wait_n('S0')})\ns_barrier")
    st.stamp()
    for fi in (0, 1):
        for ins in frag_reads(fi): a(ins)
    NF = 18*9
    fill = {0: [(k, i, 'S2') for k, i in slab_items(2)] + [(k, i, 'H%d' % u) for u in range(8, 12) for k, i in h_items(u)],
            1: [(k, i, 'S3') for k, i in slab_items(3)] + [(k, i, 'H%d' % u) for u in range(12, 16) for k, i in h_items(u)],
            2: [(k, i, 'H%d' % u) for u in range(16, 18) for k, i in h_items(u)]}
    for u in range(18):
        rho = u // 4
        if u % 4 == 0 and u > 0: st.stamp()
        q = fill.get(rho, [])
        for nu in range(9):
            fi = 9*u + nu; wf = WF + 4*(fi % 4)
            if nu == 0: a(f"s_waitcnt vmcnt({min(63, vq.wait_n('H%d' % u))})")
            if (u % 4 == 3 and nu == 7 and rho + 1 <= 4):
                if rho + 1 <= 3: a(f"s_waitcnt vmcnt({min(63, vq.wait_n('S%d' % (rho+1)))})")
                else: a(f"s_waitcnt vmcnt({min(63, len(vq.q) - vq.marker)})")
                a("s_barrier")
            a(f"s_waitcnt lgkmcnt({2 if fi+1 < NF else 0})")
            rd = frag_reads(fi+2) if fi+2 < NF else []
            for tau in range(4):
                acc = accreg(tau, nu)
                c = "0" if u == 0 else f"v[{acc}:{acc+3}]"
                a(f"v_mfma_f32_16x16x32_bf16 v[{acc}:{acc+3}], v[{wf}:{wf+3}], {hreg(tau,u)}, {c}")
                if tau in (0, 1) and tau < len(rd): a(rd[tau])
                elif q and (tau == 2 or tau == 3):
                    k, ins, tag = q.pop(0)
                    for i in ins: a(i)
                    if k == 'vm': vq.issue(tag)
            if u == 8 and nu == 0:
                a(f"s_cmp_ge_u32 s{S_W}, 2\ns_cbranch_scc1 G2_skip4")
                for k, ins in slab_items(4):
                    for i in ins: a(i)
                a.label("G2_skip4")
                vq.marker = len(vq.q)
        if u == 8:
            pass
    st.stamp()
    a("s_nop 7")
    n = 0
    for th in range(2):
        for nu in range(9):
            pk = PK + 4*(n % 2); n += 1
            for j in range(2):
                acc = accreg(2*th+j, nu)
                a(f"v_cvt_pk_bf16_f32 v{pk+2*j}, v{acc}, v{acc+1}\nv_cvt_pk_bf16_f32 v{pk+2*j+1}, v{acc+2}, v{acc+3}")
            a(f"s_add_u32 s{S_T}, s{S_PB}, {(th*9+nu)*8192}\nbuffer_store_dwordx4 v[{pk}:{pk+3}], v{V_L16}, s[{SRD_P}:{SRD_P+3}], s{S_T} offen")
    st.stamp(); st.stamp(True); st.dump(4, S_W, 200, 201, 24)
    a.label("G2_end")
    a("s_endpgm")
    return khead("g2_kernel") + a.text(), kdesc("g2_kernel", 512, 102 if DIAG else 80, 256)
```

```python
from common import *

RING = 0
CONV = 65536
CONV_CH = 4*KR_PITCH + 512 + 4096
SLAB = 9216
def slab_addr(sig):
    if sig < 8: return 65536 + SLAB*sig
    if sig < 10: return 139264 + SLAB*(sig-8)
    if sig < 17: return SLAB*(sig-10)
    return 65536
LDS = 163840
SIG2U = [0, 1, 5, 6, 9, 10, 14, 15, 2, 7, 11, 16, 3, 8, 12, 17, 4, 13]

(V_L16, V_WA, V_WB, V_S1, V_S2, V_DP, V_DS, V_CA, V_CB, V_CY, V_T0, V_T1, V_T2, V_POLL, V_ONE) = range(1, 16)
XV = 16
ACC = [48, 112]
WF = 176
TMP = 200
ST = 208
V_D = 216
V_RD = 225
V_F0 = 228
C_ACC = 48; C_A = [80, 144]; C_B = [112, 176]; C_PK = 208
G_ACC = 48; G_WF = 192; G_PK = 208
S_W = 3
SRD_W, SRD_XF, SRD_H, SRD_A, SRD_B, SRD_C, SRD_CNT = 12, 16, 20, 24, 28, 32, 36
(S_WM0P, S_WM0S, S_COLP, S_COLS, S_X0, S_HP, S_HS, S_NL2E, S_T, S_T2, S_CH, S_CB,
 S_CA, S_CBOFF, S_SL0, S_SL1, S_SL2, S_SL3, S_SL4, S_WDSRC, S_HG, S_PB) = range(40, 62)
S_ID_S, S_ID_MT, S_ID_Q = 62, 63, 64
S_P0, S_P1, S_P2, S_P3 = 65, 66, 67, 68
S_X = [S_X0, 69, 70, 71]
S_FX, S_FY, S_FP = 72, 73, 74
S_SRC0 = 75
S_SPIN = 100
S_T3 = 101
SPIN_MAX = 1 << 18

class VQ:
    def __init__(s): s.q = []
    def issue(s, tag): s.q.append(tag)
    def wait_n(s, tag):
        idx = max(i for i, t in enumerate(s.q) if t == tag)
        return min(63, len(s.q) - 1 - idx)

def xreg(tau, u):
    if u < 16: b = (4*u+tau)*4; return f"a[{b}:{b+3}]"
    b = XV + (4*(u-16)+tau)*4; return f"v[{b}:{b+3}]"

def w_dma(GG):
    slot = GG % 8; p, G = divmod(GG, 9)
    if p < 4:
        return [[f"s_add_u32 m0, s{S_WM0P}, {slot*8192 + 1024*i}",
                 f"s_add_u32 s{S_T}, s{S_COLP}, {(64*G + 16*i)*9216 + 64*p}",
                 f"buffer_load_dwordx4 v{V_DP}, s[{SRD_W}:{SRD_W+3}], s{S_T} offen lds"] for i in range(2)]
    return [[f"s_add_u32 m0, s{S_WM0S}, {slot*8192}",
             f"s_add_u32 s{S_T}, s{S_COLS}, {64*G*9216}",
             f"buffer_load_dwordx4 v{V_DS}, s[{SRD_W}:{SRD_W+3}], s{S_T} offen lds"]]
def x_loads(G):
    items = []
    for kk in range(2):
        u = 2*G + kk
        for tau in range(4):
            items.append(([f"buffer_load_dwordx4 {xreg(tau,u)}, v{V_L16}, s[{SRD_XF}:{SRD_XF+3}], s{S_X[tau]} offen offset:{1024*(u&3)}"], 'X%d' % G))
        if (u & 3) == 3: items.append(([f"s_add_u32 s{S_X[t]}, s{S_X[t]}, 4096" for t in range(4)], None))
    return items
def dstep_list():
    L_ = []
    for p in range(4):
        for u in range(18):
            for ch in range(2): L_.append((p, u, ch))
    for u in range(18): L_.append((4, u, 0))
    return L_
DSTEPS = dstep_list()
def dstep_group(d):
    p, u, ch = DSTEPS[d]; return 9*p + u//2
def w_reads(d):
    p, u, ch = DSTEPS[d]; slot = dstep_group(d) % 8; wf = WF + 8*(d % 3); out = []
    for m in range(2):
        if p < 4:
            o = slot*8192 + (u & 1)*4096 + m*2048; r = V_WA if ch == 0 else V_WB
            out += [f"ds_read_b64_tr_b16 v[{wf+4*m}:{wf+4*m+1}], v{r} offset:{o}",
                    f"ds_read_b64_tr_b16 v[{wf+4*m+2}:{wf+4*m+3}], v{r} offset:{o+256}"]
        else:
            o = slot*8192 + (u & 1)*2048 + m*1024
            out += [f"ds_read_b64_tr_b16 v[{wf+4*m}:{wf+4*m+1}], v{V_S1} offset:{o}",
                    f"ds_read_b64_tr_b16 v[{wf+4*m+2}:{wf+4*m+3}], v{V_S2} offset:{o}"]
    return out
def g1acc(p, ch, m, tau):
    return ACC[p % 2] + ((ch*2+m)*4+tau)*4
def epi_values(G, U, S, tb):
    out = []
    for i in (0, 2):
        T0 = TMP + (tb + i) % 8; T1 = TMP + (tb + i + 1) % 8
        g0, g1, u0, u1 = G+i, G+i+1, U+i, U+i+1
        out += [(f"v_mul_f32 v{T0}, s{S_NL2E}, v{g0}", 1), (f"v_mul_f32 v{T1}, s{S_NL2E}, v{g1}", 1),
                (f"v_exp_f32 v{T0}, v{T0}", 2), (f"v_exp_f32 v{T1}, v{T1}", 2),
                (f"v_mul_f32 v{u0}, v{g0}, v{u0}", 1),
                (f"v_add_f32 v{T0}, 1.0, v{T0}", 1), (f"v_add_f32 v{T1}, 1.0, v{T1}", 1),
                (f"v_rcp_f32 v{T0}, v{T0}", 2), (f"v_rcp_f32 v{T1}, v{T1}", 2),
                (f"v_mul_f32 v{u1}, v{g1}, v{u1}", 1),
                (f"v_mul_f32 v{u0}, v{u0}, v{T0}", 1), (f"v_mul_f32 v{u1}, v{u1}, v{T1}", 1),
                (f"v_cvt_pk_bf16_f32 v{S+i//2}, v{u0}, v{u1}", 1)]
    return out
def epi_stream(p):
    out = []; tb = 0
    for tau in range(4):
        S = ST + 4*(tau % 2)
        if p < 4:
            for ch in range(2):
                out += epi_values(g1acc(p, ch, 0, tau), g1acc(p, ch, 1, tau), S+2*ch, tb); tb = (tb + 4) % 8
            out.append((f"s_add_u32 s{S_T2}, s{S_HP}, {tau*18432}", 1))
            out.append((f"buffer_store_dwordx4 v[{S}:{S+3}], v{V_L16}, s[{SRD_H}:{SRD_H+3}], s{S_T2} offen offset:{1024*p} sc1", 1, 'st%d' % p))
        else:
            out += epi_values(g1acc(p, 0, 0, tau), g1acc(p, 0, 1, tau), S, tb); tb = (tb + 4) % 8
            out.append((f"s_add_u32 s{S_T2}, s{S_HS}, {tau*18432}", 1))
            out.append((f"buffer_store_dwordx2 v[{S}:{S+1}], v{V_L16}, s[{SRD_H}:{SRD_H+3}], s{S_T2} offen sc1", 1, 'st%d' % p))
    return out

def hreg(tau, sig): return xreg(tau, sig)
def gacc(tau, nu): return G_ACC + (nu*4+tau)*4
def slab_dma(rho):
    items = [([f"s_add_u32 s{S_T}, s{S_WDSRC}, s{S_P0}"], None)] if False else []
    return items
def h_loads(sig):
    u = SIG2U[sig]
    return [([f"s_add_u32 s{S_T3}, s{S_HG}, {tau*18432 + (u//4)*4096}",
              f"buffer_load_dwordx4 {hreg(tau,sig)}, v{V_L16}, s[{SRD_H}:{SRD_H+3}], s{S_T3} offen offset:{1024*(u%4)} sc1"], 'H%d' % sig) for tau in range(4)]
def wd_round(rho):
    sl = [S_SL0, S_SL1, S_SL2, S_SL3, S_SL4][rho]
    src = S_SRC0 + rho
    items = []
    for i in range(9):
        items.append(([f"s_add_u32 m0, s{sl}, {1024*i}",
                       f"buffer_load_dwordx4 v{V_D+i}, s[{SRD_A}:{SRD_A+3}], s{src} offen lds"], 'S%d' % rho))
    return items
def wd_reads(sig, nu, fi):
    wf = G_WF + 4*(fi % 4)
    base = slab_addr(sig) + 32*nu
    k = 0 if base + 4608 < 65536 else (1 if base - 61440 + 4608 < 65536 else 2)
    base -= (0, 61440, 122880)[k]
    return [f"ds_read_b64_tr_b16 v[{wf}:{wf+1}], v{V_RD+k} offset:{base}",
            f"ds_read_b64_tr_b16 v[{wf+2}:{wf+3}], v{V_RD+k} offset:{base+4608}"]

class Sched:
    def __init__(s, a, vq): s.a, s.vq = a, vq; s.mf = []; s.pre = []; s.gap = []; s.cost = []
    def add(s, ins): s.mf.append(ins); s.pre.append([]); s.gap.append([]); s.cost.append(0); return len(s.mf)-1
    def put(s, i, item, cost=1): s.gap[i].append(item); s.cost[i] += cost
    def emit_item(s, it):
        a, vq = s.a, s.vq
        k = it[0]
        if k == 'i': a(it[1])
        elif k == 'vm':
            for ins in it[1]: a(ins)
            if it[2]: vq.issue(it[2])
        elif k == 'lgkm': a(f"s_waitcnt lgkmcnt({it[1]})")
        elif k == 'vmwait': a(f"s_waitcnt vmcnt({vq.wait_n(it[1])})")
        elif k == 'fn': it[1]()
    def spread(s, stream, lo, hi, cap):
        tot = sum(c for _, c in stream); n = hi - lo; ei = 0; done = 0.0
        for gi in range(lo, hi):
            target = tot * (gi - lo + 1) / n
            while ei < len(stream) and done + stream[ei][1] <= target + 0.5 and (s.cost[gi] + stream[ei][1] <= cap or s.cost[gi] == 0):
                s.put(gi, stream[ei][0], stream[ei][1]); done += stream[ei][1]; ei += 1
        while ei < len(stream):
            s.put(hi-1, stream[ei][0], stream[ei][1]); ei += 1
    def emit(s):
        for i in range(len(s.mf)):
            for it in s.pre[i]: s.emit_item(it)
            s.a(s.mf[i])
            for it in s.gap[i]: s.emit_item(it)

def gen():
    a = Asm(); vq = VQ(); st = Stamps(a, 1, base=80)
    uid = [0]
    def raise_flag(cnt_soff_reg, val):
        uid[0] += 1; lab = f"M_rf{uid[0]}"
        a(f"s_cmp_lg_u32 s{S_W}, 0\ns_cbranch_scc1 {lab}")
        a(f"v_mov_b32 v{V_ONE}, {val}\ns_mov_b64 exec, 1\nbuffer_atomic_add v{V_ONE}, off, s[{SRD_CNT}:{SRD_CNT+3}], s{cnt_soff_reg}\ns_mov_b64 exec, -1")
        a.label(lab)
    def poll_issue(soff_reg):
        a(f"buffer_load_dword v{V_POLL}, off, s[{SRD_CNT}:{SRD_CNT+3}], s{soff_reg} sc1"); vq.issue('POLL')
    def poll_check(soff_reg, shift, need):
        uid[0] += 1; n = uid[0]
        a(f"s_waitcnt vmcnt({vq.wait_n('POLL')})")
        a.label(f"M_pc{n}")
        a(f"v_readfirstlane_b32 s{S_P0}, v{V_POLL}\ns_nop 0\ns_bfe_u32 s{S_P0}, s{S_P0}, {0x80000 | shift}\ns_cmp_ge_u32 s{S_P0}, {need}\ns_cbranch_scc1 M_po{n}")
        a(f"s_add_u32 s{S_SPIN}, s{S_SPIN}, 1\ns_cmp_ge_u32 s{S_SPIN}, {SPIN_MAX}\ns_cbranch_scc1 M_po{n}")
        a(f"buffer_load_dword v{V_POLL}, off, s[{SRD_CNT}:{SRD_CNT+3}], s{soff_reg} sc1\ns_waitcnt vmcnt(0)\ns_branch M_pc{n}")
        a.label(f"M_po{n}")

    a("s_cmp_ge_u32 s2, 256\ns_cbranch_scc1 M_end")
    st.stamp(True); st.stamp()
    a(f"s_load_dwordx2 s[4:5], s[0:1], {A_WS}\ns_load_dwordx2 s[6:7], s[0:1], {A_WG}\ns_load_dwordx2 s[8:9], s[0:1], {A_WU}\ns_load_dwordx2 s[10:11], s[0:1], {A_WD}")
    a(f"v_lshrrev_b32 v{V_T0}, 6, v0\nv_and_b32 v0, 63, v0\ns_and_b32 s{S_ID_S}, s2, 7\ns_lshr_b32 s{S_P0}, s2, 3")
    a(f"v_readfirstlane_b32 s{S_W}, v{V_T0}\ns_and_b32 s{S_ID_Q}, s{S_P0}, 3\ns_lshr_b32 s{S_ID_MT}, s{S_P0}, 2")
    a(f"v_lshlrev_b32 v{V_L16}, 4, v0")
    a(f"v_lshrrev_b32 v{V_T0}, 4, v0\nv_bfe_u32 v{V_T1}, v0, 2, 2\nv_lshl_add_u32 v{V_T1}, v{V_T0}, 3, v{V_T1}")
    a(f"v_and_b32 v{V_T2}, 3, v0\nv_lshlrev_b32 v{V_T2}, 3, v{V_T2}\nv_and_b32 v{V_T0}, 1, v{V_T0}")
    a(f"v_lshl_add_u32 v{V_WA}, v{V_T1}, 6, v{V_T2}\nv_lshl_add_u32 v{V_WA}, v{V_T0}, 5, v{V_WA}\nv_xor_b32 v{V_WB}, 32, v{V_WA}")
    a(f"v_lshl_add_u32 v{V_S1}, v{V_T1}, 5, v{V_T2}\nv_lshl_add_u32 v{V_S1}, v{V_T0}, 7, v{V_S1}")
    a(f"v_lshlrev_b32 v{V_T0}, 8, v{V_T0}\nv_sub_u32 v{V_S2}, v{V_S1}, v{V_T0}\nv_add_u32 v{V_S2}, 128, v{V_S2}")
    a(f"v_lshrrev_b32 v{V_T0}, 2, v0\nv_mul_u32_u24 v{V_DP}, 9216, v{V_T0}\nv_lshrrev_b32 v{V_T0}, 4, v0\nv_and_b32 v{V_T0}, 2, v{V_T0}")
    a(f"v_and_b32 v{V_T1}, 3, v0\nv_xor_b32 v{V_T0}, v{V_T0}, v{V_T1}\nv_lshl_add_u32 v{V_DP}, v{V_T0}, 4, v{V_DP}")
    a(f"v_lshrrev_b32 v{V_T0}, 1, v0\nv_lshrrev_b32 v{V_T1}, 1, v{V_T0}\nv_and_b32 v{V_T1}, 4, v{V_T1}\nv_xor_b32 v{V_T0}, v{V_T0}, v{V_T1}")
    a(f"v_mul_u32_u24 v{V_DS}, 9216, v{V_T0}\nv_and_b32 v{V_T0}, 1, v0\nv_lshl_add_u32 v{V_DS}, v{V_T0}, 4, v{V_DS}")
    a(f"s_and_b32 s{S_P0}, s{S_W}, 1\ns_lshr_b32 s{S_P1}, s{S_W}, 1")
    a(f"s_lshl_b32 s{S_WM0P}, s{S_P1}, 12\ns_lshl_b32 s{S_P2}, s{S_P0}, 11\ns_add_u32 s{S_WM0P}, s{S_WM0P}, s{S_P2}")
    a(f"s_lshl_b32 s{S_WM0S}, s{S_P1}, 11\ns_lshl_b32 s{S_P2}, s{S_P0}, 10\ns_add_u32 s{S_WM0S}, s{S_WM0S}, s{S_P2}")
    a(f"s_mul_i32 s{S_COLP}, s{S_ID_S}, 1152\ns_mul_i32 s{S_P2}, s{S_ID_Q}, 288\ns_add_u32 s{S_COLP}, s{S_COLP}, s{S_P2}")
    a(f"s_mul_i32 s{S_P2}, s{S_P1}, {32*9216}\ns_add_u32 s{S_COLP}, s{S_COLP}, s{S_P2}\ns_and_b32 s{S_P3}, s{S_ID_Q}, 1")
    a(f"s_xor_b32 s{S_P2}, s{S_P3}, 1\ns_lshl_b32 s{S_P2}, s{S_P2}, 8\ns_add_u32 s{S_COLS}, s{S_COLP}, s{S_P2}")
    a(f"s_lshl_b32 s{S_P2}, s{S_P3}, 5\ns_add_u32 s{S_COLP}, s{S_COLP}, s{S_P2}")
    a(f"s_lshl_b32 s{S_P1}, s{S_ID_MT}, 4\ns_lshl_b32 s{S_P2}, s{S_W}, 2\ns_add_u32 s{S_P1}, s{S_P1}, s{S_P2}\ns_mul_i32 s{S_X[0]}, s{S_P1}, 18432")
    for t in range(1, 4): a(f"s_add_u32 s{S_X[t]}, s{S_X[0]}, {18432*t}")
    a(f"s_lshl_b32 s{S_P2}, s{S_ID_S}, 7\ns_add_u32 s{S_P1}, s{S_P1}, s{S_P2}\ns_mul_i32 s{S_HG}, s{S_P1}, 18432")
    a(f"s_mul_i32 s{S_P1}, s{S_ID_Q}, 9\ns_add_u32 s{S_P1}, s{S_P1}, s{S_P3}\ns_lshl_b32 s{S_P1}, s{S_P1}, 9\ns_add_u32 s{S_HP}, s{S_HG}, s{S_P1}")
    a(f"s_lshr_b32 s{S_P1}, s{S_ID_Q}, 1\ns_mul_i32 s{S_P1}, s{S_P1}, 9216\ns_add_u32 s{S_P1}, s{S_P1}, 4096\ns_lshl_b32 s{S_P2}, s{S_P3}, 3\ns_add_u32 s{S_P1}, s{S_P1}, s{S_P2}\ns_add_u32 s{S_HS}, s{S_HG}, s{S_P1}")
    a(f"s_mov_b32 s{S_NL2E}, {fl(-LOG2E)}\ns_mov_b32 s{S_SPIN}, 0")
    a(f"s_lshl_b32 s{S_CA}, s{S_ID_MT}, 3\ns_add_u32 s{S_CA}, s{S_CA}, s{S_ID_S}\ns_lshl_b32 s{S_CA}, s{S_CA}, 7")
    a(f"s_lshl_b32 s{S_CBOFF}, s{S_ID_MT}, 2\ns_add_u32 s{S_CBOFF}, s{S_CBOFF}, s{S_ID_Q}\ns_lshl_b32 s{S_CBOFF}, s{S_CBOFF}, 7\ns_add_u32 s{S_CBOFF}, s{S_CBOFF}, {CNT_B}")
    a("s_waitcnt lgkmcnt(0)")
    a(f"s_and_b32 s{S_P0}, s{S_W}, 1\ns_cmp_eq_u32 s{S_P0}, 0\ns_cselect_b32 s{SRD_W}, s6, s8\ns_cselect_b32 s{SRD_W+1}, s7, s9\ns_mov_b32 s{SRD_W+2}, {W_BYTES}\ns_mov_b32 s{SRD_W+3}, 0x00020000")
    srd(a, SRD_XF, 4, 128*18*1024, WS_XF)
    srd(a, SRD_H, 4, 8*128*18*1024, WS_H)
    srd(a, SRD_A, 4, 2*D*KR_PITCH, WS_KR)
    srd(a, SRD_B, 4, D*4096, WS_XT)
    srd(a, SRD_C, 4, D*4096, WS_Y)
    srd(a, SRD_CNT, 4, CNT_BYTES, WS_CNT)
    stream = []
    for G in range(9):
        if G < 8: stream += [(it, 'W%d' % G) for it in w_dma(G)]
        stream += x_loads(G)
    a(f"s_min_u32 s{S_P0}, s2, 64\ns_lshl_b32 s{S_P1}, s2, 1\ns_add_u32 s{S_CH}, s{S_P0}, s{S_P1}\ns_add_u32 s{S_CH}, s{S_CH}, s{S_W}")
    a(f"s_cmp_lt_u32 s2, 64\ns_cselect_b32 s{S_P0}, 3, 2\ns_cmp_lt_u32 s{S_W}, s{S_P0}\ns_cselect_b32 s{S_P3}, 1, 0")
    NPRE = 12
    a(f"s_mul_i32 s{S_CB}, s{S_W}, {CONV_CH}\ns_add_u32 s{S_CB}, s{S_CB}, {CONV}")
    a(f"v_and_b32 v{V_T0}, 3, v0\nv_sub_u32 v{V_T0}, 3, v{V_T0}\nv_mul_u32_u24 v{V_CA}, {KR_PITCH}, v{V_T0}")
    a(f"v_bfe_u32 v{V_T0}, v0, 2, 2\nv_lshlrev_b32 v{V_T0}, 3, v{V_T0}\nv_sub_u32 v{V_CA}, v{V_CA}, v{V_T0}")
    a(f"v_bfe_u32 v{V_T0}, v0, 4, 1\nv_lshlrev_b32 v{V_T0}, 4, v{V_T0}\nv_lshrrev_b32 v{V_T1}, 5, v0\nv_lshlrev_b32 v{V_T1}, 5, v{V_T1}\nv_sub_u32 v{V_T0}, v{V_T0}, v{V_T1}")
    a(f"v_add_u32 v{V_CA}, v{V_CA}, v{V_T0}\nv_add_u32 v{V_CA}, {4088 - 512*7 - 32*14}, v{V_CA}\nv_add_u32 v{V_CA}, s{S_CB}, v{V_CA}")
    a(f"v_and_b32 v{V_T1}, 15, v0\nv_lshl_add_u32 v{V_CB}, v{V_T1}, 5, v{V_T0}\nv_add_u32 v{V_CB}, {4*KR_PITCH + 64}, v{V_CB}\nv_add_u32 v{V_CB}, s{S_CB}, v{V_CB}")
    a(f"v_lshlrev_b32 v{V_CY}, 5, v{V_T1}\nv_lshrrev_b32 v{V_T1}, 4, v0\nv_lshl_add_u32 v{V_CY}, v{V_T1}, 3, v{V_CY}")
    a(f"s_cmp_eq_u32 s{S_P3}, 0\ns_cbranch_scc1 M_pre_nc")
    a(f"s_mul_i32 s{S_P0}, s{S_CH}, {KR_PITCH}\ns_lshl_b32 s{S_P1}, s{S_CH}, 12")
    for i in range(4):
        a(f"s_add_u32 m0, s{S_CB}, {4*KR_PITCH + 512 + 1024*i}\ns_add_u32 s{S_T}, s{S_P1}, {1024*i}")
        a(f"buffer_load_dwordx4 v{V_L16}, s[{SRD_B}:{SRD_B+3}], s{S_T} offen lds")
    for c in range(4):
        for i in range(4):
            a(f"s_add_u32 m0, s{S_CB}, {c*KR_PITCH + 1024*i}\ns_add_u32 s{S_T}, s{S_P0}, {(c&1)*D*KR_PITCH + 4*(c>>1) + 1024*i}")
            a(f"buffer_load_dwordx4 v{V_L16}, s[{SRD_A}:{SRD_A+3}], s{S_T} offen lds")
    a(f"v_mov_b32 v{C_PK}, 0\nv_mov_b32 v{C_PK+1}, 0\nv_mov_b32 v{C_PK+2}, 0\nv_mov_b32 v{C_PK+3}, 0")
    a(f"v_add_u32 v{V_T0}, {4*KR_PITCH}, v{V_L16}")
    a(f"v_bfe_u32 v{V_T1}, v0, 2, 2\nv_mul_u32_u24 v{V_T1}, {KR_PITCH}, v{V_T1}\nv_and_b32 v{V_T2}, 3, v0\nv_lshl_add_u32 v{V_T1}, v{V_T2}, 4, v{V_T1}\nv_add_u32 v{V_T1}, 4096, v{V_T1}")
    a(f"v_cmp_gt_u32 vcc, 32, v0\ns_nop 1\nv_cndmask_b32 v{V_T0}, v{V_T1}, v{V_T0}, vcc\nv_add_u32 v{V_T0}, s{S_CB}, v{V_T0}")
    a(f"ds_write_b128 v{V_T0}, v[{C_PK}:{C_PK+3}]")
    a.label("M_pre_nc")
    npre_vm = 0
    for it, tag in stream[:NPRE]:
        for ins in it: a(ins)
        if tag: npre_vm += 1
    a(f"s_waitcnt vmcnt({npre_vm}) lgkmcnt(0)\ns_barrier")
    st.stamp()
    a(f"s_cmp_eq_u32 s{S_P3}, 0\ns_cbranch_scc1 M_noconv")
    def creads(rho):
        k0 = 2*rho; A = C_A[rho & 1]; B = C_B[rho & 1]; out = []
        for p in range(8):
            o = 512*(7-p) + 32*(14-k0); ob = 512*p + 32*(14-k0)
            out.append(f"ds_read_b128 v[{B+4*p}:{B+4*p+3}], v{V_CB} offset:{ob}")
            out.append(f"ds_read_b64 v[{A+4*p}:{A+4*p+1}], v{V_CA} offset:{o}")
            out.append(f"ds_read_b64 v[{A+4*p+2}:{A+4*p+3}], v{V_CA} offset:{o+8}")
        return out
    for ins in creads(0): a(ins)
    rest = [it for it, tag in stream[NPRE:]]
    ri = 0; nrest = len(rest); gap_no = 0
    for rho in range(8):
        A = C_A[rho & 1]; B = C_B[rho & 1]
        nxt = creads(rho+1) if rho < 7 else []
        a("s_waitcnt lgkmcnt(0)")
        gi = 0
        for p in range(8):
            for c in range(p, 8):
                acc = C_ACC + 4*c
                cc = "0" if (rho == 0 and p == 0) else f"v[{acc}:{acc+3}]"
                a(f"v_mfma_f32_16x16x32_bf16 v[{acc}:{acc+3}], v[{A+4*p}:{A+4*p+3}], v[{B+4*(c-p)}:{B+4*(c-p)+3}], {cc}")
                if gi < len(nxt): a(nxt[gi])
                else:
                    want = (nrest * (gap_no+1)) // (8*12)
                    if ri < min(want, nrest):
                        for ins in rest[ri]: a(ins)
                        ri += 1
                    gap_no += 1
                gi += 1
    while ri < nrest:
        for ins in rest[ri]: a(ins)
        ri += 1
    a(f"s_lshl_b32 s{S_P1}, s{S_CH}, 12\ns_nop 7")
    for c in range(8):
        acc = C_ACC + 4*c; pk = C_PK + 2*(c % 4)
        a(f"v_cvt_pk_bf16_f32 v{pk}, v{acc}, v{acc+1}\nv_cvt_pk_bf16_f32 v{pk+1}, v{acc+2}, v{acc+3}")
        a(f"buffer_store_dwordx2 v[{pk}:{pk+1}], v{V_CY}, s[{SRD_C}:{SRD_C+3}], s{S_P1} offen offset:{512*c} sc1")
    a("s_branch M_join")
    a.label("M_noconv")
    for it, tag in stream[NPRE:]:
        for ins in it: a(ins)
    a.label("M_join")
    for it, tag in stream:
        if tag: vq.issue(tag)
    st.stamp()
    a(f"s_mov_b32 s{S_P0}, {(2**32 + 287)//288}")
    for i in range(9):
        a(f"v_add_u32 v{V_T0}, {1024*i}, v{V_L16}\nv_mul_hi_u32 v{V_D+i}, v{V_T0}, s{S_P0}\nv_mul_u32_u24 v{V_D+i}, {1152-288}, v{V_D+i}\nv_add_u32 v{V_D+i}, v{V_D+i}, v{V_T0}")
    a(f"v_lshrrev_b32 v{V_T0}, 4, v0\nv_bfe_u32 v{V_T1}, v0, 2, 2\nv_lshl_add_u32 v{V_T0}, v{V_T0}, 2, v{V_T1}\nv_mul_u32_u24 v{V_T0}, 288, v{V_T0}")
    a(f"v_and_b32 v{V_T1}, 3, v0\nv_lshl_add_u32 v{V_RD}, v{V_T1}, 3, v{V_T0}\nv_add_u32 v{V_RD+1}, 61440, v{V_RD}\nv_add_u32 v{V_RD+2}, 122880, v{V_RD}")
    a(f"s_mul_i32 s{S_P0}, s{S_W}, {SLAB}")
    a(f"s_add_u32 s{S_SL0}, s{S_P0}, 65536\ns_add_u32 s{S_SL1}, s{S_P0}, {65536+4*SLAB}\ns_add_u32 s{S_SL3}, s{S_P0}, {2*SLAB}")
    a(f"s_add_u32 s{S_P1}, s{S_P0}, 139264\ns_sub_u32 s{S_P2}, s{S_P0}, {2*SLAB}\ns_cmp_lt_u32 s{S_W}, 2\ns_cselect_b32 s{S_SL2}, s{S_P1}, s{S_P2}")
    a(f"s_cmp_eq_u32 s{S_W}, 0\ns_mov_b32 s{S_P1}, {6*SLAB}\ns_cselect_b32 s{S_SL4}, s{S_P1}, 65536")
    a(f"s_mul_i32 s{S_WDSRC}, s{S_ID_S}, {576*1152}\ns_mul_i32 s{S_P0}, s{S_ID_Q}, 288\ns_add_u32 s{S_WDSRC}, s{S_WDSRC}, s{S_P0}")
    for rho in range(5):
        us = [SIG2U[min(4*rho+w, 17)] for w in range(4)]
        a(f"s_mov_b32 s{S_SRC0+rho}, {us[0]*32*1152}")
        for w in range(1, 4):
            a(f"s_cmp_eq_u32 s{S_W}, {w}\ns_cselect_b32 s{S_SRC0+rho}, {us[w]*32*1152}, s{S_SRC0+rho}")
        a(f"s_add_u32 s{S_SRC0+rho}, s{S_SRC0+rho}, s{S_WDSRC}")
    a(f"s_lshl_b32 s{S_P0}, s{S_ID_MT}, 2\ns_add_u32 s{S_P0}, s{S_P0}, s{S_ID_Q}\ns_lshl_b32 s{S_P0}, s{S_P0}, 3\ns_lshl_b32 s{S_P1}, s{S_W}, 1\ns_add_u32 s{S_P0}, s{S_P0}, s{S_P1}")
    a(f"s_mul_i32 s{S_P0}, s{S_P0}, 72\ns_add_u32 s{S_P0}, s{S_P0}, s{S_ID_S}\ns_lshl_b32 s{S_PB}, s{S_P0}, 10")
    a(f"s_waitcnt vmcnt({vq.wait_n('W0')})\ns_barrier")
    for d in (0, 1):
        for ins in w_reads(d): a(ins)
    ND = len(DSTEPS)
    d0 = 0
    for p in range(5):
        if p in (1, 4): st.stamp()
        nd = 36 if p < 4 else 18
        S = Sched(a, vq)
        first = {}
        for d in range(d0, d0+nd):
            _, u, ch = DSTEPS[d]; wf = WF + 8*(d % 3)
            for m in range(2):
                for tau in range(4):
                    acc = g1acc(p, ch, m, tau)
                    c = "0" if u == 0 else f"v[{acc}:{acc+3}]"
                    i = S.add(f"v_mfma_f32_16x16x32_bf16 v[{acc}:{acc+3}], v[{wf+4*m}:{wf+4*m+3}], {xreg(tau,u)}, {c}")
                    if m == 0 and tau == 0: first[d] = i
        for d in range(d0, d0+nd):
            i0 = first[d]; _, u, ch = DSTEPS[d]; GG = dstep_group(d)
            if d + 2 < ND and dstep_group(d+2) != dstep_group(d+1):
                Gn = dstep_group(d+2)
                S.pre[i0].append(('vmwait', 'W%d' % Gn))
                if p == 3 and Gn == 9*3+4: S.pre[i0].append(('vmwait', 'st1'))
                if p == 4 and Gn == 9*4+6: S.pre[i0].append(('vmwait', 'st2'))
                S.pre[i0].append(('i', 's_barrier'))
                if Gn == 10: S.pre[i0].append(('fn', lambda: raise_y()))
                if p == 3 and Gn == 9*3+4: S.pre[i0].append(('fn', lambda: raise_flag(S_CA, 1)))
                if p == 4 and Gn == 9*4+6: S.pre[i0].append(('fn', lambda: raise_flag(S_CA, 256)))
                if 8 <= Gn + 6 < 45:
                    for n, it in enumerate(w_dma(Gn + 6)): S.put(i0 + 1 + 4*n, ('vm', it, 'W%d' % (Gn+6)), 3)
            S.pre[i0].append(('lgkm', len(w_reads(d+1)) if d+1 < ND else 0))
            if p == 0 and ch == 0 and u % 2 == 0: S.pre[i0].append(('vmwait', 'X%d' % (u//2)))
            if d + 2 < ND:
                for j, ins in enumerate(w_reads(d+2)): S.put(i0 + 2*j, ('i', ins), 1)
        ng = len(S.mf)
        def raise_y():
            a(f"s_and_b32 s{S_P1}, s2, 7\ns_lshl_b32 s{S_P1}, s{S_P1}, 7\ns_add_u32 s{S_P1}, s{S_P1}, {CNT_Y}")
            raise_flag(S_P1, 1)
        if p in (1, 2):
            if p == 1: srd_items = [(('fn', lambda: srd(a, SRD_A, 10, W_BYTES)), 4)]
            else: srd_items = []
            S.spread(srd_items + [(('vm', it, tag), len(it)) for it, tag in wd_round(p-1)], 8, ng//2, 2)
        if p == 4:
            S.pre[first[d0+1]].append(('fn', lambda: poll_issue(S_CA)))
            S.pre[first[d0+5]].append(('fn', lambda: poll_check(S_CA, 0, 4)))
            k = 0
            for dd in range(5, 18):
                sigs = [sg for sg in range(8) if False]
            order = [(sg, it, tag) for sg in range(8) for it, tag in h_loads(sg)]
            di = 5; cnt = 0
            for sg, it, tag in order:
                while di < sg + 1: di += 1; cnt = 0
                S.put(first[d0+di] + 1 + 2*cnt, ('vm', it, tag), 2); cnt += 1
                if cnt == 3: di += 1; cnt = 0
            S.pre[first[d0+16]].append(('fn', lambda: poll_issue(S_CA)))
        if p > 0:
            es = [((('vm', [e[0]], e[2]) if len(e) > 2 else ('i', e[0])), e[1]) for e in epi_stream(p-1)]
            S.spread(es, 2, ng - 3, 2 if p < 4 else 3)
        S.emit()
        d0 += nd
    a("s_barrier\ns_nop 4")
    for e in epi_stream(4):
        a(e[0])
        if len(e) > 2: vq.issue(e[2])
    srd(a, SRD_B, 4, 8*4*8*9*8*1024, WS_P)
    for it, tag in wd_round(2):
        for ins in it: a(ins)
        vq.issue(tag)
    poll_check(S_CA, 8, 4)
    a("s_barrier")
    st.stamp()
    order = [(sg, nu) for sg in range(14) for nu in range(9)] + [(sg, nu) for nu in range(9) for sg in range(14, 18)]
    NF = len(order)
    for fi in (0, 1):
        for ins in wd_reads(*order[fi], fi): a(ins)
    S = Sched(a, vq); ff = []
    for fi, (sg, nu) in enumerate(order):
        wf = G_WF + 4*(fi % 4)
        for tau in range(4):
            acc = gacc(tau, nu)
            c = "0" if sg == 0 else f"v[{acc}:{acc+3}]"
            i = S.add(f"v_mfma_f32_16x16x32_bf16 v[{acc}:{acc+3}], v[{wf}:{wf+3}], {hreg(tau,sg)}, {c}")
            if tau == 0: ff.append(i)
    def fidx(sg, nu): return order.index((sg, nu))
    for fi, (sg, nu) in enumerate(order):
        i0 = ff[fi]
        if (nu == 0 and sg < 14) or (sg >= 14 and nu == 0): S.pre[i0].append(('vmwait', 'H%d' % sg))
        S.pre[i0].append(('lgkm', 2 if fi+1 < NF else 0))
        if fi + 2 < NF:
            for j, ins in enumerate(wd_reads(*order[fi+2], fi+2)): S.put(i0 + j, ('i', ins), 1)
    for sg, tag in ((8, 'S2'), (12, 'S3')):
        i0 = ff[fidx(sg, 0) - 2]
        S.pre[i0].insert(0, ('i', 's_barrier')); S.pre[i0].insert(0, ('vmwait', tag))
    marker = {}
    i0 = ff[fidx(14, 0) - 2]
    S.pre[i0].insert(0, ('i', 's_barrier')); S.pre[i0].insert(0, ('fn', lambda: a(f"s_waitcnt vmcnt({min(63, len(vq.q) - marker['s4'])})")))
    f0 = [(('vm', it, tag), len(it)) for sg in range(8, 12) for it, tag in h_loads(sg)] + [(('vm', it, tag), len(it)) for it, tag in wd_round(3)]
    S.spread(f0, ff[fidx(0, 1)], ff[fidx(2, 0)], 2)
    i0 = ff[fidx(2, 0)]
    S.pre[i0].insert(0, ('fn', lambda: raise_flag(S_CA, 65536))); S.pre[i0].insert(0, ('i', 's_barrier')); S.pre[i0].insert(0, ('vmwait', 'st4'))
    def round4():
        a(f"s_cmp_ge_u32 s{S_W}, 2\ns_cbranch_scc1 M_skip4")
        for it, tag in wd_round(4):
            for ins in it: a(ins)
        a.label("M_skip4"); marker['s4'] = len(vq.q)
    S.pre[ff[fidx(2, 1)]].append(('fn', round4))
    S.pre[ff[fidx(4, 0)]].append(('fn', lambda: poll_issue(S_CA)))
    S.pre[ff[fidx(5, 4)]].append(('fn', lambda: poll_check(S_CA, 16, 4)))
    f1 = [(('vm', it, tag), len(it)) for sg in range(12, 18) for it, tag in h_loads(sg)]
    S.spread(f1, ff[fidx(5, 5)], ff[fidx(8, 0)], 2)
    def pstore(nu):
        out = []
        for th in range(2):
            pk = G_PK + 4*th
            for j in range(2):
                acc = gacc(2*th+j, nu)
                out += [(('i', f"v_cvt_pk_bf16_f32 v{pk+2*j}, v{acc}, v{acc+1}"), 1), (('i', f"v_cvt_pk_bf16_f32 v{pk+2*j+1}, v{acc+2}, v{acc+3}"), 1)]
            out.append((('i', f"s_add_u32 s{S_T2}, s{S_PB}, {(th*9+nu)*8192}"), 1))
            out.append((('vm', [f"buffer_store_dwordx4 v[{pk}:{pk+3}], v{V_L16}, s[{SRD_B}:{SRD_B+3}], s{S_T2} offen sc1"], 'P'), 1))
        return out
    for nu in range(8):
        lo = ff[fidx(14, nu+1)] + 3
        S.spread(pstore(nu), lo, lo + 12, 2)
    S.emit()
    st.stamp()
    a("s_nop 7")
    for it, c in pstore(8): S.emit_item(it)
    a(f"s_load_dwordx2 s[6:7], s[0:1], {A_X}\ns_load_dwordx2 s[8:9], s[0:1], {A_OUT}")
    a(f"v_and_b32 v{V_F0}, 15, v0\nv_mul_u32_u24 v{V_F0}, 1152, v{V_F0}\nv_lshrrev_b32 v{V_T0}, 4, v0\nv_lshl_add_u32 v{V_F0}, v{V_T0}, 3, v{V_F0}")
    a(f"v_lshrrev_b32 v{V_F0+1}, 2, v0\nv_lshlrev_b32 v{V_F0+1}, 12, v{V_F0+1}\nv_and_b32 v{V_T1}, 3, v0\nv_lshl_add_u32 v{V_F0+1}, v{V_T1}, 4, v{V_F0+1}")
    a(f"s_mul_i32 s{S_P0}, s{S_W}, 3072\nv_add_u32 v{V_F0+2}, s{S_P0}, v{V_L16}")
    a(f"v_bfe_u32 v{V_T1}, v0, 2, 2\nv_lshl_add_u32 v{V_T1}, v{V_T0}, 2, v{V_T1}\nv_lshlrev_b32 v{V_T1}, 6, v{V_T1}\nv_and_b32 v{V_T2}, 3, v0\nv_lshl_add_u32 v{V_T1}, v{V_T2}, 3, v{V_T1}\nv_add_u32 v{V_F0+3}, s{S_P0}, v{V_T1}")
    a(f"s_lshl_b32 s{S_P0}, s{S_ID_MT}, 8\ns_lshl_b32 s{S_P1}, s{S_ID_S}, 5\ns_add_u32 s{S_P0}, s{S_P0}, s{S_P1}")
    a(f"s_mul_i32 s{S_P1}, s{S_ID_Q}, 144\ns_lshl_b32 s{S_P2}, s{S_W}, 4\ns_add_u32 s{S_P1}, s{S_P1}, s{S_P2}")
    a(f"s_mul_i32 s{S_FX}, s{S_P0}, 1152\ns_lshl_b32 s{S_P2}, s{S_P1}, 1\ns_add_u32 s{S_FX}, s{S_FX}, s{S_P2}")
    a(f"s_lshl_b32 s{S_FY}, s{S_P1}, 12\ns_lshl_b32 s{S_P2}, s{S_P0}, 1\ns_add_u32 s{S_FY}, s{S_FY}, s{S_P2}")
    a(f"s_lshl_b32 s{S_P0}, s{S_ID_MT}, 2\ns_add_u32 s{S_P0}, s{S_P0}, s{S_ID_Q}\ns_lshl_b32 s{S_P0}, s{S_P0}, 3\ns_add_u32 s{S_P0}, s{S_P0}, s{S_ID_S}\ns_mul_i32 s{S_P0}, s{S_P0}, 9\ns_add_u32 s{S_P0}, s{S_P0}, s{S_W}\ns_lshl_b32 s{S_FP}, s{S_P0}, 13")
    a(f"v_and_b32 v{V_T0}, 7, v0\nv_lshlrev_b32 v{V_T0}, 7, v{V_T0}\ns_mov_b32 s{S_P3}, {CNT_Y}")
    a.label("M_py")
    a(f"buffer_load_dword v{V_POLL}, v{V_T0}, s[{SRD_CNT}:{SRD_CNT+3}], s{S_P3} offen sc1\ns_waitcnt vmcnt(0) lgkmcnt(0)")
    a(f"s_add_u32 s{S_SPIN}, s{S_SPIN}, 1\ns_cmp_ge_u32 s{S_SPIN}, {SPIN_MAX}\ns_cbranch_scc1 M_py_out")
    a(f"v_cmp_gt_u32 vcc, 32, v{V_POLL}\ns_nop 4\ns_cbranch_vccnz M_py")
    a.label("M_py_out")
    srd(a, SRD_W, 6, X_BYTES); srd(a, SRD_XF, 8, X_BYTES)
    a("s_barrier")
    raise_flag(S_CBOFF, 1)
    FX, FY, FT, FP, FS = 144, 156, 168, 48, 180
    def unit_pre(k):
        a(f"s_add_u32 s{S_T}, s{S_FX}, {k*128}\ns_add_u32 s{S_T2}, s{S_T}, 18432")
        a(f"buffer_load_dwordx2 v[{FX+4*k}:{FX+4*k+1}], v{V_F0}, s[{SRD_W}:{SRD_W+3}], s{S_T} offen\nbuffer_load_dwordx2 v[{FX+4*k+2}:{FX+4*k+3}], v{V_F0}, s[{SRD_W}:{SRD_W+3}], s{S_T2} offen")
        a(f"s_add_u32 s{S_T}, s{S_FY}, {k*64*4096}\nbuffer_load_dwordx4 v[{FY+4*k}:{FY+4*k+3}], v{V_F0+1}, s[{SRD_C}:{SRD_C+3}], s{S_T} offen sc1")
    def unit_y(k):
        a(f"ds_write_b128 v{V_F0+2}, v[{FY+4*k}:{FY+4*k+3}] offset:{1024*k}")
    def unit_y2(k):
        a(f"ds_read_b64_tr_b16 v[{FT+4*k}:{FT+4*k+1}], v{V_F0+3} offset:{1024*k}\nds_read_b64_tr_b16 v[{FT+4*k+2}:{FT+4*k+3}], v{V_F0+3} offset:{1024*k+32}")
    def unit_p(k):
        for s_ in range(8):
            if s_ % 4 == 0: a(f"s_add_u32 s{S_T}, s{S_FP}, {k*4*8192 + 4096*(s_//4)}")
            a(f"buffer_load_dwordx4 v[{FP+32*k+4*s_}:{FP+32*k+4*s_+3}], v{V_L16}, s[{SRD_B}:{SRD_B+3}], s{S_T} offen offset:{1024*(s_%4)} sc1")
    def unit_sum(k, later):
        for th in range(2):
            for j in range(2):
                r = FX+4*k+2*th+j; y = FT+4*k+2*th+j; o = FS+4*th+2*j
                a(f"v_lshlrev_b32 v{o}, 16, v{r}\nv_and_b32 v{o+1}, 0xffff0000, v{r}\nv_lshlrev_b32 v{V_T0}, 16, v{y}\nv_and_b32 v{V_T1}, 0xffff0000, v{y}")
                a(f"v_add_f32 v{o}, v{o}, v{V_T0}\nv_add_f32 v{o+1}, v{o+1}, v{V_T1}")
        for s_ in range(8):
            a(f"s_waitcnt vmcnt({later + 7 - s_})")
            for dd in range(4):
                r = FP+32*k+4*s_+dd
                a(f"v_lshlrev_b32 v{V_T0}, 16, v{r}\nv_and_b32 v{V_T1}, 0xffff0000, v{r}\nv_add_f32 v{FS+2*dd}, v{FS+2*dd}, v{V_T0}\nv_add_f32 v{FS+2*dd+1}, v{FS+2*dd+1}, v{V_T1}")
        pk = FS + 8 + 4*(k % 2)
        for dd in range(4): a(f"v_cvt_pk_bf16_f32 v{pk+dd}, v{FS+2*dd}, v{FS+2*dd+1}")
        a(f"s_add_u32 s{S_T}, s{S_FX}, {k*128}\ns_add_u32 s{S_T2}, s{S_T}, 18432")
        a(f"buffer_store_dwordx2 v[{pk}:{pk+1}], v{V_F0}, s[{SRD_XF}:{SRD_XF+3}], s{S_T} offen\nbuffer_store_dwordx2 v[{pk+2}:{pk+3}], v{V_F0}, s[{SRD_XF}:{SRD_XF+3}], s{S_T2} offen")
    def wait_b(tag):
        a.label(f"M_pb{tag}")
        a(f"buffer_load_dword v{V_POLL}, off, s[{SRD_CNT}:{SRD_CNT+3}], s{S_CBOFF} sc1\ns_waitcnt vmcnt(0)")
        a(f"s_add_u32 s{S_SPIN}, s{S_SPIN}, 1\ns_cmp_ge_u32 s{S_SPIN}, {SPIN_MAX}\ns_cbranch_scc1 M_pbo{tag}")
        a(f"v_readfirstlane_b32 s{S_P0}, v{V_POLL}\ns_nop 0\ns_cmp_lt_u32 s{S_P0}, 8\ns_cbranch_scc1 M_pb{tag}")
        a.label(f"M_pbo{tag}")
    for nunits, lab in ((3, "w0"), (2, "wx")):
        if nunits == 3: a(f"s_cmp_lg_u32 s{S_W}, 0\ns_cbranch_scc1 M_fin2")
        else: a.label("M_fin2")
        for k in range(nunits): unit_pre(k)
        a("s_waitcnt vmcnt(0)")
        for k in range(nunits): unit_y(k)
        a("s_waitcnt lgkmcnt(0)")
        for k in range(nunits): unit_y2(k)
        wait_b(lab)
        for k in range(nunits): unit_p(k)
        a("s_waitcnt lgkmcnt(0)")
        for k in range(nunits):
            unit_sum(k, 8*(nunits-1-k) + 2*k)
        st_n = st.n
        st.stamp(); st.stamp(True); st.dump(4, S_W, 200, 201, 24)
        if nunits == 3: a("s_endpgm"); st.n = st_n
    a.label("M_end")
    a("s_endpgm")
    return khead("main_kernel") + a.text(), kdesc("main_kernel", 512, 102, 256)
```

```python
from common import *

NPF = 6
def prefetch(a):
    a(f"s_load_dwordx2 s[70:71], s[0:1], {A_WG}\ns_load_dwordx2 s[72:73], s[0:1], {A_WU}\ns_load_dwordx2 s[74:75], s[0:1], {A_WD}")
    a("v_lshlrev_b32 v150, 4, v0\ns_mul_i32 s68, s2, 20736\ns_mul_i32 s69, s3, 1728\ns_add_u32 s68, s68, s69")
    a("s_waitcnt lgkmcnt(0)")
    for i, p in enumerate((70, 72, 74)):
        a(f"s_mov_b32 s76, s{p}\ns_mov_b32 s77, s{p+1}\ns_mov_b32 s78, {W_BYTES}\ns_mov_b32 s79, 0x00020000")
        a(f"buffer_load_dwordx4 v[152:155], v150, s[76:79], s68 offen")
        a(f"buffer_load_dwordx4 v[156:159], v150, s[76:79], s68 offen offset:1024")

def gen_prep():
    a = Asm(); st = Stamps(a, 0, base=80)
    a("s_cmp_ge_u32 s2, 256\ns_cbranch_scc1 P_end")
    st.stamp(True); st.stamp()
    a(f"s_load_dwordx2 s[4:5], s[0:1], {A_WS}")
    a("v_lshrrev_b32 v1, 6, v0\nv_and_b32 v0, 63, v0\ns_cmp_ge_u32 s2, 64")
    a("v_readfirstlane_b32 s3, v1")
    a("s_cbranch_scc1 P_kgen")
    a(f"s_load_dwordx2 s[6:7], s[0:1], {A_X}")
    a("v_and_b32 v1, 31, v0\nv_lshrrev_b32 v2, 5, v0")
    a("v_mul_u32_u24 v3, 1152, v1\nv_lshlrev_b32 v48, 4, v2\nv_add_u32 v3, v3, v48")
    a("s_mul_i32 s20, s2, 36864\ns_mul_i32 s21, s3, 96\ns_add_u32 s22, s20, s21")
    a("s_waitcnt lgkmcnt(0)")
    srd(a, 8, 6, X_BYTES)
    for i in range(3):
        a(f"buffer_load_dwordx4 v[{4+4*i}:{7+4*i}], v3, s[8:11], s22 offen offset:{32*i}")
    prefetch(a)
    srd(a, 12, 4, 128*18*1024, WS_XF)
    srd(a, 16, 4, D*4096, WS_XT)
    a("v_mul_u32_u24 v42, 48, v1\ns_lshl_b32 s23, s3, 2\nv_add_u32 v43, s23, v42")
    a(f"s_waitcnt vmcnt({NPF})")
    for i in range(12):
        a(f"v_lshlrev_b32 v{16+2*i}, 16, v{4+i}\nv_and_b32 v{17+2*i}, 0xffff0000, v{4+i}")
    for i in range(12): a(f"v_add_f32 v{4+i}, v{16+2*i}, v{17+2*i}")
    for i in range(6): a(f"v_add_f32 v{4+i}, v{4+i}, v{10+i}")
    for i in range(3): a(f"v_add_f32 v{4+i}, v{4+i}, v{7+i}")
    a("v_add_f32 v4, v4, v5\nv_add_f32 v40, v4, v6\nv_mov_b32 v41, v40\ns_nop 1")
    a("v_permlane32_swap_b32 v40, v41\ns_nop 1\nv_add_f32 v40, v40, v41")
    a("ds_write_b32 v43, v40\ns_waitcnt lgkmcnt(0)\ns_barrier")
    a("ds_read_b128 v[4:7], v42\nds_read_b128 v[8:11], v42 offset:16\nds_read_b128 v[12:15], v42 offset:32\ns_waitcnt lgkmcnt(0)")
    for i in range(6): a(f"v_add_f32 v{4+i}, v{4+i}, v{10+i}")
    for i in range(3): a(f"v_add_f32 v{4+i}, v{4+i}, v{7+i}")
    a(f"v_add_f32 v4, v4, v5\nv_add_f32 v4, v4, v6\nv_mul_f32 v44, {fl(1.0/576)}, v4")
    for i in range(24): a(f"v_sub_f32 v{16+i}, v{16+i}, v44")
    a("v_mul_f32 v40, v16, v16\nv_mul_f32 v41, v17, v17")
    for i in range(2, 24, 2): a(f"v_fmac_f32 v40, v{16+i}, v{16+i}\nv_fmac_f32 v41, v{17+i}, v{17+i}")
    a("v_add_f32 v40, v40, v41\ns_nop 0\nv_mov_b32 v41, v40\ns_nop 1")
    a("v_permlane32_swap_b32 v40, v41\ns_nop 1\nv_add_f32 v40, v40, v41")
    a("ds_write_b32 v43, v40 offset:1536\ns_waitcnt lgkmcnt(0)\ns_barrier")
    a("ds_read_b128 v[4:7], v42 offset:1536\nds_read_b128 v[8:11], v42 offset:1552\nds_read_b128 v[12:15], v42 offset:1568\ns_waitcnt lgkmcnt(0)")
    for i in range(6): a(f"v_add_f32 v{4+i}, v{4+i}, v{10+i}")
    for i in range(3): a(f"v_add_f32 v{4+i}, v{4+i}, v{7+i}")
    a(f"v_add_f32 v4, v4, v5\nv_add_f32 v4, v4, v6\nv_mov_b32 v5, {fl(1e-5)}\nv_fmac_f32 v5, {fl(1.0/576)}, v4")
    a("v_rsq_f32 v45, v5\ns_nop 0")
    for i in range(24): a(f"v_mul_f32 v{16+i}, v{16+i}, v45")
    for i in range(12): a(f"v_cvt_pk_bf16_f32 v{4+i}, v{16+2*i}, v{17+2*i}")
    a("v_lshrrev_b32 v46, 4, v1\nv_mul_u32_u24 v46, 18432, v46\nv_lshl_add_u32 v46, v2, 8, v46\nv_and_b32 v49, 15, v1\nv_lshl_add_u32 v46, v49, 4, v46")
    a("s_mul_i32 s21, s3, 1536\ns_add_u32 s22, s20, s21")
    for i in range(3):
        a(f"buffer_store_dwordx4 v[{4+4*i}:{7+4*i}], v46, s[12:15], s22 offen offset:{512*i}")
    TB = 4096; TP = 1312
    a(f"v_mul_u32_u24 v47, {TP}, v1\nv_add_u32 v47, v47, v48\ns_mul_i32 s21, s3, 96\nv_add_u32 v47, s21, v47")
    for i in range(3):
        a(f"ds_write_b128 v47, v[{4+4*i}:{7+4*i}] offset:{TB+32*i}")
    a("v_lshrrev_b32 v49, 4, v0\nv_and_b32 v50, 15, v0\nv_lshrrev_b32 v51, 2, v50\nv_and_b32 v52, 3, v0")
    a("v_lshlrev_b32 v53, 3, v49\nv_add_u32 v53, v53, v51")
    a(f"v_mul_u32_u24 v53, {TP}, v53\nv_lshlrev_b32 v52, 3, v52\nv_add_u32 v53, v53, v52\nv_add_u32 v53, s21, v53")
    a(f"v_add_u32 v54, {4*TP}, v53")
    a(f"v_lshlrev_b32 v55, 12, v50\nv_lshlrev_b32 v49, 4, v49\nv_add_u32 v55, v55, v49")
    a(f"s_mul_i32 s24, s3, {3*16*4096}\ns_lshl_b32 s25, s2, 6\ns_add_u32 s25, s25, s24")
    a("s_waitcnt lgkmcnt(0)\ns_barrier")
    for i in range(3):
        a(f"ds_read_b64_tr_b16 v[{16+4*i}:{17+4*i}], v53 offset:{TB+32*i}")
        a(f"ds_read_b64_tr_b16 v[{18+4*i}:{19+4*i}], v54 offset:{TB+32*i}")
    a("s_waitcnt lgkmcnt(0)")
    for i in range(3):
        a(f"s_add_u32 s26, s25, {i*16*4096}\nbuffer_store_dwordx4 v[{16+4*i}:{19+4*i}], v55, s[16:19], s26 offen")
    n0 = st.n; st.stamp(); st.stamp(True); st.dump(4, 3, 60, 61, 28); st.n = n0
    a("s_cmp_lg_u32 s2, 0\ns_cbranch_scc1 P_end")
    a("v_mov_b32 v28, 0\nv_mov_b32 v29, 0\nv_mov_b32 v30, 0\nv_mov_b32 v31, 0")
    srd(a, 20, 4, CNT_BYTES, WS_CNT)
    a("v_lshlrev_b32 v32, 4, v0\ns_lshl_b32 s26, s3, 10")
    a("buffer_store_dwordx4 v[28:31], v32, s[20:23], s26 offen\ns_add_u32 s26, s26, 12288\nbuffer_store_dwordx4 v[28:31], v32, s[20:23], s26 offen")
    a("s_endpgm")
    a.label("P_kgen")
    for r, off in ((6, A_LOGA), (8, A_AIM), (10, A_CR), (12, A_CI), (14, A_LDT), (16, A_DSK)):
        a(f"s_load_dwordx2 s[{r}:{r+1}], s[0:1], {off}")
    a("s_sub_u32 s20, s2, 64\ns_mul_i32 s20, s20, 3\ns_lshr_b32 s21, s3, 2\ns_add_u32 s20, s20, s21")
    a("s_and_b32 s22, s3, 3\ns_and_b32 s23, s22, 1\ns_lshr_b32 s24, s22, 1")
    a("s_lshl_b32 s25, s23, 6\nv_add_u32 v1, s25, v0")
    a("s_lshl_b32 s26, s20, 8\nv_lshlrev_b32 v2, 1, v1\nv_add_u32 v2, s26, v2")
    a("s_lshl_b32 s27, s20, 1\nv_mov_b32 v3, s27")
    a("s_waitcnt lgkmcnt(0)")
    srd(a, 28, 6, PAR_BYTES); srd(a, 32, 8, PAR_BYTES); srd(a, 36, 10, PAR_BYTES); srd(a, 40, 12, PAR_BYTES)
    srd(a, 44, 14, D*2); srd(a, 48, 16, D*2); srd(a, 52, 4, 2*D*KR_PITCH, WS_KR)
    a("buffer_load_ushort v8, v3, s[44:47], 0 offen\nbuffer_load_ushort v4, v2, s[28:31], 0 offen")
    a("buffer_load_ushort v5, v2, s[32:35], 0 offen\nbuffer_load_ushort v6, v2, s[36:39], 0 offen")
    a("buffer_load_ushort v7, v2, s[40:43], 0 offen\nbuffer_load_ushort v9, v3, s[48:51], 0 offen")
    prefetch(a)
    a("s_cmp_eq_u32 s24, 0")
    a(f"s_mov_b32 s57, {fl(16.0)}\ns_cselect_b32 s56, 1.0, 4.0\ns_cselect_b32 s57, s57, {fl(64.0)}\ns_cselect_b32 s58, 0, {fl(512.0)}")
    RP = 528; CH = 96*RP
    a(f"s_mul_i32 s59, s21, {CH}")
    a(f"s_mul_i32 s60, s24, {16*RP}\ns_add_u32 s60, s60, s59")
    a(f"s_mul_i32 s61, s24, {32*RP}\ns_add_u32 s61, s61, s59\ns_add_u32 s61, s61, {32*RP}")
    a("v_lshlrev_b32 v10, 2, v1\nv_add_u32 v11, s61, v10\nv_add_u32 v10, s60, v10")
    a("s_lshl_b32 s62, s22, 6\nv_add_u32 v60, s62, v0\nv_lshlrev_b32 v60, 3, v60")
    for jj in range(9):
        r = 136+jj
        a(f"v_sub_u32 v{r}, {2047-jj}, v60\nv_max_i32 v{r}, 0, v{r}\nv_cvt_f32_u32 v{r}, v{r}\nv_cvt_pk_bf16_f32 v{r}, v{r}, v{r}\nv_lshlrev_b32 v{r}, 16, v{r}\nv_cvt_u32_f32 v{r}, v{r}")
        a(f"v_add_u32 v61, 0x600, v{r}\nv_lshrrev_b32 v61, 2, v61\nv_cmp_gt_u32 vcc, 0x200, v{r}\ns_nop 1\nv_cndmask_b32 v{r}, v61, v{r}, vcc")
        a(f"v_lshlrev_b32 v{r}, 2, v{r}\nv_add_u32 v{r}, s59, v{r}")
    a(f"s_waitcnt vmcnt({NPF})")
    for r in (4, 5, 6, 7, 8, 9): a(f"v_lshlrev_b32 v{r}, 16, v{r}")
    import math
    l2e_hi = struct.unpack('<f', struct.pack('<f', LOG2E))[0]
    l2e_lo = LOG2E - l2e_hi
    a(f"s_mov_b32 s63, {fl(l2e_hi)}\ns_mov_b32 s64, {fl(l2e_lo*math.log(2))}\ns_mov_b32 s65, {fl(math.log(2))}")
    def expbf(x, t0, t1):
        a(f"v_mul_f32 v{t0}, s63, v{x}\nv_fma_f32 v{t1}, s63, v{x}, -v{t0}\nv_exp_f32 v{t0}, v{t0}\nv_mul_f32 v{t1}, s65, v{t1}")
        a(f"v_fmac_f32 v{t1}, s64, v{x}\nv_fma_f32 v{x}, v{t0}, v{t1}, v{t0}\nv_cvt_pk_bf16_f32 v{x}, v{x}, v{x}\nv_lshlrev_b32 v{x}, 16, v{x}")
    expbf(8, 12, 13)
    expbf(4, 14, 15)
    a(f"v_mul_f32 v4, v4, v8\nv_mul_f32 v5, v5, v8\nv_mul_f32 v6, v6, v8\nv_mul_f32 v7, v7, v8")
    a(f"v_mul_f32 v4, {fl(-LOG2E)}, v4\nv_mul_f32 v5, 0.15915494, v5\nv_add_f32 v6, v6, v6\nv_add_f32 v7, v7, v7")
    def cis(sreg, re, im, t0, t1):
        a(f"v_mul_f32 v{t0}, {sreg}, v4\nv_mul_f32 v{t1}, {sreg}, v5\nv_exp_f32 v{t0}, v{t0}\nv_fract_f32 v{t1}, v{t1}")
        a(f"s_nop 0\nv_cos_f32 v{re}, v{t1}\nv_sin_f32 v{im}, v{t1}\ns_nop 0\nv_mul_f32 v{re}, v{re}, v{t0}\nv_mul_f32 v{im}, v{im}, v{t0}")
    cis("s56", 16, 17, 12, 13)
    cis("s57", 18, 19, 14, 15)
    cis("s58", 20, 21, 12, 13)
    a("v_mul_f32 v22, v6, v20\nv_mul_f32 v23, v6, v21\nv_fma_f32 v22, -v7, v21, v22\nv_fmac_f32 v23, v7, v20")
    a("v_mov_b32 v24, 1.0\nv_mov_b32 v25, 0")
    X = [(22, 23), (26, 27)]; Y = [(24, 25), (28, 29)]
    for s in range(32):
        xc, xn_ = X[s & 1], X[(s+1) & 1]
        t = 30 + (s & 1)*2
        a(f"v_cvt_pk_bf16_f32 v{t}, v{xc[0]}, -v{xc[1]}")
        if s < 16:
            yc, yn = Y[s & 1], Y[(s+1) & 1]
            a(f"v_cvt_pk_bf16_f32 v{t+1}, v{yc[0]}, v{yc[1]}")
        if s < 31:
            a(f"v_mul_f32 v{xn_[0]}, v{xc[0]}, v18\nv_mul_f32 v{xn_[1]}, v{xc[0]}, v19")
        a(f"ds_write_b32 v11, v{t} offset:{s*RP}")
        if s < 16:
            if s < 15: a(f"v_mul_f32 v{yn[0]}, v{yc[0]}, v16\nv_mul_f32 v{yn[1]}, v{yc[0]}, v17")
            a(f"ds_write_b32 v10, v{t+1} offset:{s*RP}")
        if s < 31:
            a(f"v_fma_f32 v{xn_[0]}, -v{xc[1]}, v19, v{xn_[0]}\nv_fmac_f32 v{xn_[1]}, v{xc[1]}, v18")
        if s < 15:
            a(f"v_fma_f32 v{yn[0]}, -v{yc[1]}, v17, v{yn[0]}\nv_fmac_f32 v{yn[1]}, v{yc[1]}, v16")
    a("v_and_b32 v12, 15, v0\nv_lshrrev_b32 v13, 4, v0")
    a(f"v_mul_u32_u24 v14, {RP}, v12\nv_lshlrev_b32 v15, 4, v13\nv_add_u32 v14, v14, v15")
    a(f"s_lshr_b32 s60, s22, 1\ns_mul_i32 s60, s60, {16*RP}\ns_add_u32 s60, s60, s59")
    a(f"s_mul_i32 s61, s22, {16*RP}\ns_add_u32 s61, s61, s59\ns_add_u32 s61, s61, {32*RP}")
    a("v_add_u32 v15, s61, v14\nv_add_u32 v14, s60, v14")
    a("s_lshl_b32 s62, s22, 10\ns_add_u32 s62, s62, s59\nv_lshlrev_b32 v12, 6, v12\nv_lshlrev_b32 v13, 4, v13\nv_add_u32 v12, v12, v13\nv_add_u32 v12, s62, v12")
    a("s_waitcnt lgkmcnt(0)\ns_barrier")
    for t in range(8):
        a(f"ds_read_b128 v[{72+4*t}:{75+4*t}], v14 offset:{64*t}\nds_read_b128 v[{104+4*t}:{107+4*t}], v15 offset:{64*t}")
    for t in range(8):
        a(f"s_waitcnt lgkmcnt({14-2*t})")
        c = "0" if t == 0 else "v[16:19]"
        a(f"v_mfma_f32_16x16x32_bf16 v[16:19], v[{72+4*t}:{75+4*t}], v[{104+4*t}:{107+4*t}], {c}")
    a("s_barrier")
    a("s_nop 7\nds_write_b128 v12, v[16:19]\ns_waitcnt lgkmcnt(0)\ns_barrier")
    for jj in range(9):
        a(f"ds_read_b32 v{24+jj}, v{136+jj}")
    a("v_cmp_eq_u32 vcc, 0x7f8, v60\ns_nop 1\nv_cndmask_b32 v9, 0, v9, vcc\ns_waitcnt lgkmcnt(0)\nv_add_f32 v31, v31, v9\nv_cndmask_b32 v32, v32, 0, vcc")
    for i in range(4): a(f"v_cvt_pk_bf16_f32 v{36+i}, v{24+2*i}, v{25+2*i}\nv_cvt_pk_bf16_f32 v{40+i}, v{25+2*i}, v{26+2*i}")
    a(f"v_lshlrev_b32 v60, 1, v60\ns_mul_i32 s26, s20, {KR_PITCH}\ns_add_u32 s27, s26, {D*KR_PITCH}")
    a("buffer_store_dwordx4 v[36:39], v60, s[52:55], s26 offen\nbuffer_store_dwordx4 v[40:43], v60, s[52:55], s27 offen")
    a("s_cmp_lg_u32 s22, 0\ns_cbranch_scc1 P_nopad")
    a(f"v_mov_b32 v44, 0\nv_mov_b32 v45, 0\nv_mov_b32 v46, 0\nv_mov_b32 v47, 0\nv_and_b32 v48, 3, v0\nv_lshlrev_b32 v48, 4, v48\nv_bfe_u32 v49, v0, 2, 1\nv_mul_u32_u24 v49, {D*KR_PITCH}, v49")
    a("v_add_u32 v48, v48, v49\nv_add_u32 v48, 4096, v48\nv_cmp_gt_u32 vcc, 8, v0\ns_and_saveexec_b64 s[66:67], vcc\nbuffer_store_dwordx4 v[44:47], v48, s[52:55], s26 offen\ns_mov_b64 exec, s[66:67]")
    a.label("P_nopad")
    st.stamp(); st.stamp(True); st.dump(4, 3, 60, 61, 28)
    a.label("P_end")
    a("s_endpgm")
    return khead("prep_kernel") + a.text(), kdesc("prep_kernel", 160, 102 if DIAG else 80, 160)
```

```python
import sys
from common import *
import prep
def build(which=("prep",), out=None):
    launches = []; code = []; descs = []
    if "prep" in which:
        c, d = prep.gen_prep(); code.append(c); descs.append(d)
        launches.append("; @launch kernel=prep_kernel grid=(256,1,1) block=(768,1,1) lds=163840")
    if "main" in which:
        import mainloop
        c, d = mainloop.gen(); code.append(c); descs.append(d)
        launches.append("; @launch kernel=main_kernel grid=(256,1,1) block=(256,1,1) lds=%d" % mainloop.LDS)
    if "g1" in which:
        import gemm1
        c, d = gemm1.gen(); code.append(c); descs.append(d)
        launches.append("; @launch kernel=g1_kernel grid=(256,1,1) block=(256,1,1) lds=%d" % gemm1.LDS)
    if "g2" in which:
        import gemm2
        c, d = gemm2.gen(); code.append(c); descs.append(d)
        launches.append("; @launch kernel=g2_kernel grid=(256,1,1) block=(256,1,1) lds=%d" % gemm2.LDS)
    if "fin" in which:
        import final
        c, d = final.gen(); code.append(c); descs.append(d)
        launches.append("; @launch kernel=fin_kernel grid=(256,1,1) block=(576,1,1) lds=%d" % final.LDS)
    hdr = open('cdna_kernels/' + KNAME + '.s.ref').read().split('\n')
    head = [l for l in hdr if l.startswith(';') and '@launch' not in l and 'Override' not in l and 'grid=ceil' not in l and 'v1 =' not in l]
    head = [l for l in head if l.startswith('; Kernarg') or l.startswith(';   offset')]
    txt = '\n'.join(head) + '\n' + '\n'.join(launches) + '\n'
    txt += '.amdgcn_target "amdgcn-amd-amdhsa--gfx950"\n.text\n' + '\n'.join(code)
    txt += '.section .rodata,"a"\n' + ''.join('.p2align 6\n' + d for d in descs)
    if out: open(out, 'w').write(txt)
    return txt
if __name__ == '__main__':
    which = sys.argv[2].split(',') if len(sys.argv) > 2 else ("prep", "main")
    t = build(which, sys.argv[1])
    print(len(t), 'bytes')
```
